```python
import torch

def _softmax(x, axis=-1):
    return torch.softmax(x, dim=axis)
def _gelu(x):
    return torch.nn.functional.gelu(x, approximate="tanh")
def _silu(x):
    return torch.nn.functional.silu(x)
def _sigmoid(x):
    return torch.sigmoid(x)
def _layernorm(x, axis=-1, eps=1e-5):
    m = x.mean(dim=axis, keepdim=True)
    v = x.var(dim=axis, keepdim=True, unbiased=False)
    return (x - m) / torch.sqrt(v + eps)
def _scatter_add(tgt, idx, src, axis=0):
    return tgt.clone().index_add_(axis, idx, src)
def _segment_sum(src, seg, n):
    out = torch.zeros((n,) + src.shape[1:], dtype=src.dtype)
    return out.index_add_(0, seg, src)
def _pad(x, pw):
    flat = tuple(v for pair in reversed(pw) for v in pair)
    return torch.nn.functional.pad(x, flat)

kernel_name = 'standalone__window_attn_swin__vision'

def setup_inputs():

    _w = (lambda a: (lambda t: t.to(torch.bfloat16) if t.is_floating_point() else t)(torch.as_tensor(a)))
    H = W = 384
    C = 192
    ws = 8
    nh = 4
    shift = ws // 2
    coords = torch.stack(torch.meshgrid(torch.arange(ws), torch.arange(ws), indexing='ij'), 0).reshape(2, -1)
    rel = coords[:, :, None] - coords[:, None, :]
    rel[0] += ws - 1
    rel[1] += ws - 1
    rel[0] *= 2 * ws - 1
    rp_idx = rel.sum(0).to(torch.int64)
    img_mask = torch.zeros((1, H, W, 1), dtype=float)
    cnt = 0
    for hs in (slice(0, H - ws), slice(H - ws, H - shift), slice(H - shift, H)):
        for vs in (slice(0, W - ws), slice(W - ws, W - shift), slice(W - shift, W)):
            img_mask[:, hs, vs, :] = cnt
            cnt += 1
    mw = img_mask.reshape(1, H // ws, ws, W // ws, ws, 1).permute(0, 1, 3, 2, 4, 5).reshape(-1, ws * ws)
    am = mw[:, :, None] - mw[:, None, :]
    attn_mask = torch.where(am != 0, -100.0, 0.0).to(float)
    return {
        "x": _w((lambda *s: torch.randn(*s, dtype=torch.bfloat16) * 1.6)(1, H, W, C)),
        "wqkv": _w((lambda *s: torch.randn(*s, dtype=torch.bfloat16) * 1.6)(C, 3 * C) * 0.02),
        "wo": _w((lambda *s: torch.randn(*s, dtype=torch.bfloat16) * 0.05)(C, C) * 0.02),
        "rpb": _w((lambda *s: torch.randn(*s, dtype=torch.bfloat16) * 0.2)((2 * ws - 1) * (2 * ws - 1), nh)),
        "rp_idx": _w(rp_idx),
        "attn_mask": _w(attn_mask),
    }

def reference(x, wqkv, wo, rpb, rp_idx, attn_mask):
    B, H, W, C = x.shape
    N = rp_idx.shape[0]
    ws = int(round(N ** 0.5))
    nh = rpb.shape[-1]
    hd = C // nh
    shift = ws // 2
    xs = torch.roll(x, (-shift, -shift), (1, 2))
    nWh = H // ws
    nWw = W // ws
    xw = (lambda x, *d: x.permute(*d))(xs.reshape(B, nWh, ws, nWw, ws, C), 0, 1, 3, 2, 4, 5).reshape(B * nWh * nWw, N, C)
    qkv = (lambda x, *d: x.permute(*d))(torch.einsum('wnc,cd->wnd', xw, wqkv).reshape(-1, N, 3, nh, hd), 2, 0, 3, 1, 4)
    q, k, v = qkv[0], qkv[1], qkv[2]
    attn = torch.einsum('whid,whjd->whij', q, k) * (hd ** -0.5)
    bias = (lambda x, *d: x.permute(*d))(rpb[rp_idx.reshape(-1)].reshape(N, N, nh), 2, 0, 1)
    attn = attn + bias[None, :, :, :]
    attn = (attn.reshape(B, nWh * nWw, nh, N, N) + attn_mask[None, :, None, :, :]).reshape(-1, nh, N, N)
    attn = _softmax(attn, axis=-1)
    out = (lambda x, *d: x.permute(*d))(torch.einsum('whij,whjd->whid', attn, v), 0, 2, 1, 3).reshape(-1, N, C)
    out = torch.einsum('wnc,cd->wnd', out, wo)
    out = (lambda x, *d: x.permute(*d))(out.reshape(B, nWh, nWw, ws, ws, C), 0, 1, 3, 2, 4, 5).reshape(B, H, W, C)
    return torch.roll(out, (shift, shift), (1, 2))
```

```python
import re

TRANS = ("v_exp_f32", "v_rcp_f32", "v_log_f32", "v_rsq_f32", "v_sqrt_f32")
NODST = ("ds_write", "buffer_store", "s_cmp", "s_waitcnt", "s_barrier", "s_nop", "s_branch",
         "s_cbranch", "s_endpgm", "s_setprio", "s_bitcmp")
SCC_WR = ("s_add_", "s_sub_", "s_and_", "s_or_", "s_xor_", "s_lshl_", "s_lshr_", "s_cmp", "s_bitcmp",
          "s_andn2", "s_addc", "s_bfe", "s_min", "s_max")
SCC_RD = ("s_cselect", "s_addc", "s_cbranch_scc")

COST = dict(valu=4, trans=8, salu=4, dsr=4, dsw=8, dsw128=14, dma=16, vst=16, vld=8, wait=4, barrier=8)
LDS_LAT = 120


def regs_of(tok):
    tok = tok.strip()
    m = re.fullmatch(r"-?\|?([vas])(\d+)\|?", tok)
    if m:
        return [m.group(1) + m.group(2)]
    m = re.fullmatch(r"([vas])\[(\d+):(\d+)\]", tok)
    if m:
        return [m.group(1) + str(i) for i in range(int(m.group(2)), int(m.group(3)) + 1)]
    if tok in ("vcc", "m0", "exec", "scc"):
        return [tok]
    return []


class I:
    def __init__(self, text, rd=(), wr=(), dl=None, cost=None, early=None, tag=None):
        self.text = text
        self.dl = dl
        self.early = early
        self.tag = tag
        parts = text.split(None, 1)
        op = self.op = parts[0]
        ops = []
        if len(parts) > 1:
            ops = [o.strip() for o in parts[1].split(",")]
            last = ops[-1].split()
            self.mods = last[1:]
            ops[-1] = last[0]
        else:
            self.mods = []
        self.rd, self.wr = set(rd), set(wr)
        self.passes = 0
        self.ab, self.c = set(), set()
        self.states = 1
        self.label = text.endswith(":")
        if self.label:
            self.kind = "label"
            self.states = 0
            self.cost = 0
            return
        is_dma = op.startswith("buffer_load") and "lds" in self.mods
        nodst = op.startswith(NODST) or is_dma
        if nodst:
            for o in ops:
                self.rd.update(regs_of(o))
        else:
            self.wr.update(regs_of(ops[0]))
            for o in ops[1:]:
                self.rd.update(regs_of(o))
        if op.startswith("v_permlane"):
            self.rd.update(regs_of(ops[0]))
            self.wr.update(regs_of(ops[1]))
        if op.startswith(("v_fmac", "ds_read_u16_d16")):
            self.rd.update(regs_of(ops[0]))
        if op.startswith(SCC_WR):
            self.wr.add("scc")
        if op.startswith(SCC_RD):
            self.rd.add("scc")
        if op.startswith("s_and_saveexec"):
            self.wr.add("exec"); self.rd.add("exec")
        if op.startswith("v_mfma"):
            self.kind = "mfma"
            self.passes = 8 if "32x32" in op else 4
            self.ab = set(regs_of(ops[1])) | set(regs_of(ops[2]))
            self.c = set(regs_of(ops[3]))
        elif op.startswith(TRANS):
            self.kind = "trans"
        elif op.startswith("v_"):
            self.kind = "valu"
        elif op.startswith("ds_read"):
            self.kind = "dsr"
        elif op.startswith("ds_write"):
            self.kind = "dsw"
        elif is_dma:
            self.kind = "dma"
            self.rd.add("m0")
        elif op.startswith("buffer_store"):
            self.kind = "vst"
            self.data = set(regs_of(ops[0]))
        elif op.startswith("buffer_load"):
            self.kind = "vld"
        elif op == "s_waitcnt":
            self.kind = "wait"
        elif op == "s_barrier":
            self.kind = "barrier"
        elif op == "s_nop":
            self.kind = "salu"
            self.states = int(ops[0]) + 1
        elif op.startswith(("s_load", "s_memtime", "s_memrealtime")):
            self.kind = "smem"
        else:
            self.kind = "salu"
        if cost is not None:
            self.cost = cost
        elif self.kind == "mfma":
            self.cost = 8
        elif self.kind == "dsw" and "b128" in op:
            self.cost = COST["dsw128"]
        elif op == "s_nop":
            self.cost = 4 * self.states
        else:
            self.cost = COST.get(self.kind, 4)

    @property
    def isvalu(self):
        return self.kind in ("valu", "trans")


def is_sgpr(r):
    return r[0] == "s" and r != "scc" or r == "vcc"


def req_states(p, c):
    n = 0
    if p.kind == "mfma":
        big = p.passes == 8
        D = p.wr
        if c.kind == "mfma":
            if D & c.ab:
                n = max(n, 12 if big else 8)
            if D & c.c and not (c.c == D and c.passes == p.passes):
                n = max(n, 10 if big else 6)
            if D & c.wr and not (c.wr == D and c.passes == p.passes):
                n = max(n, 10 if big else 6)
        else:
            if D & (c.rd | c.wr):
                n = max(n, 12 if big else 8)
            if p.c & c.wr:
                n = max(n, 7 if big else 3)
    elif p.isvalu:
        ov = p.wr & c.rd
        if ov:
            vov = [r for r in ov if r[0] in "va" and r != "vcc"]
            sov = [r for r in ov if is_sgpr(r)]
            if vov:
                if c.kind == "mfma" or c.op.startswith("v_permlane") or "dpp" in c.text:
                    n = max(n, 2)
                if p.kind == "trans" and c.kind != "trans":
                    n = max(n, 1)
                if c.op.startswith(("v_readlane", "v_readfirstlane")):
                    n = max(n, 1)
            if sov:
                if c.isvalu:
                    n = max(n, 4 if c.op.startswith(("v_readlane", "v_writelane")) else 2)
                if c.kind in ("dma", "vst", "vld"):
                    n = max(n, 5)
        if "exec" in p.wr:
            n = max(n, 5)
    elif p.kind == "salu":
        if "m0" in p.wr and c.kind == "dma":
            n = max(n, 1)
    elif p.kind == "vst":
        if len(p.data) >= 3 and p.data & c.wr:
            n = max(n, 2)
    return n


class Stream:
    def __init__(self, history=()):
        self.out = []
        self.hist = list(history)
        self.q = []
        self.t = 0

    def short(self, c):
        need, dist = 0, 0
        for p in reversed(self.hist[-24:]):
            r = req_states(p, c)
            if r > dist:
                need = max(need, r - dist)
            dist += p.states
            if dist >= 13:
                break
        return need

    def wait_needed(self, c):
        k = -1
        touch = c.rd | c.wr
        for i, (p, _) in enumerate(self.q):
            if p.kind == "dsr" and (p.wr & touch):
                if c.kind == "dsr" and not (p.wr & c.rd):
                    continue
                k = i
        return k

    def raw(self, c):
        self.out.append(c)
        self.hist.append(c)
        if c.kind in ("dsr", "dsw"):
            self.q.append((c, self.t))
        if c.kind == "wait":
            m = re.search(r"lgkmcnt\((\d+)\)", c.text)
            if m:
                n = int(m.group(1))
                self.q = self.q[len(self.q) - n:] if n else []
        self.t += c.cost

    def emit(self, c, cover=LDS_LAT + 40):
        k = self.wait_needed(c)
        if k >= 0:
            while k + 1 < len(self.q) and self.t - self.q[k + 1][1] >= cover:
                k += 1
            n = min(len(self.q) - 1 - k, 15)
            self.raw(I("s_waitcnt lgkmcnt(%d)" % n))
        s = self.short(c)
        if s > 0:
            self.raw(I("s_nop %d" % (s - 1)))
        self.raw(c)


def linear(prog, history=()):
    s = Stream(history)
    for c in prog:
        s.emit(c)
    return s.out


def build_deps(prog):
    n = len(prog)
    preds = [dict() for _ in range(n)]
    lastw, readers = {}, {}
    for i, c in enumerate(prog):
        for r in c.rd:
            if r in lastw:
                p = prog[lastw[r]]
                if p.kind == "mfma":
                    lat = 0 if (c.kind == "mfma" and r in c.c and r not in c.ab) else p.passes * 4 + 24
                elif p.kind == "dsr":
                    lat = LDS_LAT
                elif p.isvalu and c.kind == "mfma":
                    lat = p.cost + 8
                elif p.kind == "trans":
                    lat = p.cost + 4
                else:
                    lat = p.cost
                preds[i][lastw[r]] = max(preds[i].get(lastw[r], 0), lat)
        for r in c.wr:
            if r in lastw:
                p = prog[lastw[r]]
                lat = p.passes * 4 + 24 if (p.kind == "mfma" and c.kind != "mfma") else 0
                preds[i][lastw[r]] = max(preds[i].get(lastw[r], 0), lat)
            for j in readers.get(r, ()):
                if j != i:
                    preds[i].setdefault(j, 0)
        for r in c.rd:
            readers.setdefault(r, []).append(i)
        for r in c.wr:
            lastw[r] = i
            readers[r] = []
    return preds


def schedule(prog, history=(), verbose=False, slack=0):
    n = len(prog)
    preds = build_deps(prog)
    succs = [[] for _ in range(n)]
    for i in range(n):
        for p, l in preds[i].items():
            succs[p].append((i, l))
    back = [i for i in range(n) if prog[i].kind == "mfma"]
    T, t = {}, 0
    for i in back:
        T[i] = t
        t += prog[i].passes * 4
    Tend = t
    dl = [0] * n
    for i in reversed(range(n)):
        if i in T:
            dl[i] = T[i]
            continue
        d = Tend + 200
        for s, l in succs[i]:
            d = min(d, dl[s] - max(l, prog[i].cost))
        if prog[i].dl is not None:
            d = min(d, prog[i].dl)
        dl[i] = d
    st = Stream(history)
    issued = [None] * n
    npred = [len(preds[i]) for i in range(n)]
    avail = set(i for i in range(n) if npred[i] == 0 and i not in T)
    bi, pipe, stall = 0, 0, 0
    left = n

    def soft(i):
        return max([issued[p] + l for p, l in preds[i].items()], default=0)

    def do(i):
        nonlocal left
        issued[i] = st.t
        st.emit(prog[i])
        left -= 1
        avail.discard(i)
        for s, _ in succs[i]:
            npred[s] -= 1
            if npred[s] == 0 and s not in T:
                avail.add(s)

    while left:
        m = back[bi] if bi < len(back) else None
        vt = T[m] if m is not None else Tend
        mready = m is not None and npred[m] == 0
        mextra = 0
        if mready:
            mextra = (4 if st.wait_needed(prog[m]) >= 0 else 0)
        mgo = mready and st.short(prog[m]) <= (1 if mextra else 0) and soft(m) <= max(st.t, pipe)
        cand = []
        for i in avail:
            c = prog[i]
            if c.early is not None and vt < c.early and mready:
                continue
            ok = soft(i) <= st.t and st.short(c) == 0
            cand.append((dl[i], i, ok))
        cand.sort()
        pick = None
        room = pipe - st.t - mextra + slack
        for d, i, ok in cand:
            if not ok:
                continue
            cst = prog[i].cost + (4 if st.wait_needed(prog[i]) >= 0 else 0)
            if (not mgo) or cst <= room or d < vt - 16:
                pick = i
                break
        if pick is not None:
            do(pick)
            continue
        if mready:
            t0 = max(st.t + mextra + 4 * max(0, st.short(prog[m]) - (1 if mextra else 0)), pipe, soft(m))
            k = st.wait_needed(prog[m])
            do(m)
            issued[m] = t0
            stall += max(0, t0 - pipe)
            prog[m].sched_t = t0
            st.t = t0 + 8
            pipe = t0 + prog[m].passes * 4
            bi += 1
            continue
        assert cand or avail, "deadlock"
        if not cand:
            cand = sorted((dl[i], i, False) for i in avail)
        i = min(cand, key=lambda x: (max(soft(x[1]), st.t + 4 * st.short(prog[x[1]])), x[0]))[1]
        st.t = max(st.t, soft(i))
        do(i)
    end = max(st.t, pipe)
    if verbose:
        cnt = {}
        for c in st.out:
            cnt[c.kind] = cnt.get(c.kind, 0) + 1
        nn = sum(1 for c in st.out if c.op == "s_nop")
        print("sched: mfma pipe %d, est %d, stall %d, n=%d nops=%d %s" % (Tend, end, stall, len(st.out), nn, cnt))
    return st.out, st


def verify(seq):
    s = Stream()
    bad = 0
    for c in seq:
        if s.short(c) > 0 or s.wait_needed(c) >= 0:
            print("HAZARD before:", c.text, s.short(c), s.wait_needed(c))
            bad += 1
        s.raw(c)
    return bad
```

```python
import sys, struct, math
sys.path.insert(0, "gen")
from asmlib import *

NAME = "standalone__window_attn_swin__vision"
OPT = dict(sched=1, ones=0, slack=0, nt=0, pf=4)
for a in sys.argv[2:]:
    k, v = a.split("=")
    OPT[k] = int(v)

def f32(x):
    return "0x%08x" % struct.unpack("<I", struct.pack("<f", x))[0]

ROWB, XB = 147456, 56623104
LOG2E = math.log2(math.e)
MASKV = f32(-100.0 * LOG2E)
BE, BO = 4, 20
def S(T, Tp): return 40 + 32 * T + 16 * Tp
R, VP, RING, OX = 104, 176, 200, 224
vA, vB, vOR, vOW4, vOW2, vWP = 232, 236, 238, 239, 240, 241
vDMA, vST4, vST2, vDD, vDS, vTAB, vMK, vMK2 = 242, 243, 244, 245, 246, 247, 248, 249
vM, vT, vAl, vSum, vM2, vAh = 250, 251, 252, 253, 254, 255
def vRr(T, lohi): return 2 * T + lohi
sXA, sXB, sO, sW, sWo, sRp = 4, 8, 12, 16, 20, 24
sH, sC, sCnt, sM0, sSt, sD0, sD1, sDd, sDs, sFW, sFH = 28, 29, 30, 31, 32, 36, 37, 38, 39, 40, 41
sMB, sMA, sT0, sStg = 42, 44, 46, 48
def vr(b, n): return "v[%d:%d]" % (b, b + n - 1)
def ar(b, n): return "a[%d:%d]" % (b, b + n - 1)
def sr(b, n): return "s[%d:%d]" % (b, b + n - 1)
def WQK(mt, ks): return ar((ks * 3 + mt) * 4, 4)
def WV(t, ks): return ar(144 + (ks * 3 + t) * 4, 4)
WOP_REG = [S(0, 1), S(0, 1) + 4, S(0, 1) + 8, S(0, 1) + 12, S(1, 0), S(1, 0) + 4, S(1, 1), S(1, 1) + 4]
def WO(t, ks):
    f = ks * 3 + t
    return ar(216 + 4 * f, 4) if f < 10 else vr(WOP_REG[f - 10], 4)
def OACC(T, lohi, t):
    if t < 2: return S(T, lohi) + 8 + 4 * t
    return (OX if T == 0 else S(0, 0)) + 4 * lohi
M32, M16 = "v_mfma_f32_32x32x16_bf16", "v_mfma_f32_16x16x32_bf16"

class Ring:
    def __init__(self): self.i = 0
    def get(self):
        r = RING + 4 * (self.i % 6); self.i += 1
        return r
ring = Ring()

def xa_read(T, ks, buf, **kw):
    r = ring.get()
    j = (ks & 3) ^ (2 * T)
    return r, I("ds_read_b128 %s, v%d offset:%d" % (vr(r, 4), vA + j, buf * 0x8000 + T * 3072 + (ks >> 2) * 1024), rd=["X"], **kw)

def qk(T, buf, pre=()):
    p, acc = [], R + 24 * T
    for ks in range(12):
        if ks < len(pre): r = pre[ks]
        else:
            r, ins = xa_read(T, ks, buf); p.append(ins)
        for mt in range(3):
            d = vr(acc + 16 * mt, 16)
            p.append(I("%s %s, %s, %s, %s" % (M32, d, WQK(mt, ks), vr(r, 4), d if ks else "0")))
    return p

def cvt(d, a, b=None):
    return I("v_cvt_pk_bf16_f32 v%d, v%d, v%d" % (d, a, a + 1 if b is None else b))

def cvt_qk(T):
    b = R + 24 * T
    return [cvt(b + i, b + 2 * i) for i in range(24)]

def vgemm(buf):
    p = []
    for vt in range(4):
        acc = R + 48 + 12 * (vt & 1)
        for ks in range(6):
            r = ring.get()
            j = (ks & 1) ^ (vt & 1)
            p.append(I("ds_read_b128 %s, v%d offset:%d" % (vr(r, 4), vB + j, buf * 0x8000 + vt * 6144 + (ks >> 1) * 1024), rd=["X"]))
            for t in range(3):
                d = vr(acc + 4 * t, 4)
                p.append(I("%s %s, %s, %s, %s" % (M16, d, vr(r, 4), WV(t, ks), d if ks else "0")))
        for t in range(3):
            o = VP + ((vt >> 1) * 3 + t) * 4 + (vt & 1) * 2
            p += [cvt(o, acc + 4 * t), cvt(o + 1, acc + 4 * t + 2)]
    return p

def sgemm():
    p = []
    for T in range(2):
        for c in range(3):
            for Tp in range(2):
                d = vr(S(T, Tp), 16)
                bias = vr(BE, 16) if T == Tp else vr(BO if T > Tp else BO + 4, 16)
                p.append(I("%s %s, %s, %s, %s" % (M32, d, vr(R + 24 * Tp + 12 + 4 * c, 4), vr(R + 24 * T + 4 * c, 4), d if c else bias)))
    return p

def maxchain(dst, regs):
    p = [I("v_max3_f32 v%d, v%d, v%d, v%d" % (dst, regs[0], regs[1], regs[2]))]
    i = 3
    while i + 1 < len(regs):
        p.append(I("v_max3_f32 v%d, v%d, v%d, v%d" % (dst, dst, regs[i], regs[i + 1]))); i += 2
    if i < len(regs):
        p.append(I("v_max_f32 v%d, v%d, v%d" % (dst, dst, regs[i])))
    return p

def softmax(T, split):
    p = []
    lo = [S(T, Tp) + r for Tp in range(2) for r in range(8)]
    hi = [x + 8 for x in lo]
    if split:
        p += maxchain(vM, lo) + maxchain(vM2, hi)
        p += [I("v_fma_f32 v%d, v%d, s%d, v%d" % (vM, vM, sC, vMK)), I("v_fma_f32 v%d, v%d, s%d, v%d" % (vM2, vM2, sC, vMK2)),
              I("v_max_f32 v%d, v%d, v%d" % (vM, vM, vM2))]
    else:
        p += maxchain(vM, [S(T, 0) + r for r in range(32)])
        p += [I("v_fma_f32 v%d, v%d, s%d, v%d" % (vM, vM, sC, vMK))]
    p += [I("v_mov_b32 v%d, v%d" % (vT, vM)), I("v_permlane32_swap_b32 v%d, v%d" % (vM, vT)),
          I("v_max_f32 v%d, v%d, v%d" % (vM, vM, vT)), I("v_sub_f32 v%d, v%d, v%d" % (vAl, vMK, vM))]
    if split: p.append(I("v_sub_f32 v%d, v%d, v%d" % (vAh, vMK2, vM)))
    first = True
    for k in range(8):
        for Tp in range(2):
            b = S(T, Tp)
            for r in (2 * k, 2 * k + 1):
                p.append(I("v_fma_f32 v%d, v%d, s%d, v%d" % (b + r, b + r, sC, vAh if (split and r >= 8) else vAl)))
                p.append(I("v_exp_f32 v%d, v%d" % (b + r, b + r)))
            if first:
                p.append(I("v_add_f32 v%d, v%d, v%d" % (vSum, b + 2 * k, b + 2 * k + 1))); first = False
            else:
                p += [I("v_add_f32 v%d, v%d, v%d" % (vSum, vSum, b + r)) for r in (2 * k, 2 * k + 1)]
            p.append(cvt(b + k, b + 2 * k))
        p.append(I("v_permlane16_swap_b32 v%d, v%d" % (S(T, 0) + k, S(T, 1) + k)))
    r0, r1 = vRr(T, 0), vRr(T, 1)
    p += [I("v_mov_b32 v%d, v%d" % (vT, vSum)), I("v_permlane32_swap_b32 v%d, v%d" % (vSum, vT)),
          I("v_add_f32 v%d, v%d, v%d" % (vSum, vSum, vT)), I("v_rcp_f32 v%d, v%d" % (r0, vSum)),
          I("v_mov_b32 v%d, v%d" % (r1, r0)), I("v_permlane16_swap_b32 v%d, v%d" % (r0, r1))]
    return p

def pv(T):
    p = []
    for s in range(2):
        for lohi in range(2):
            for t in range(3):
                d = vr(OACC(T, lohi, t), 4)
                p.append(I("%s %s, %s, %s, %s" % (M16, d, vr(VP + (s * 3 + t) * 4, 4), vr(S(T, lohi) + 4 * s, 4), d if s else "0")))
    return p

def owrite(T, ob):
    p = []
    for lohi in range(2):
        off = ob * 0x8000 + (2 * T + lohi) * 6144
        for t in range(3):
            a = OACC(T, lohi, t)
            p += [I("v_mul_f32 v%d, v%d, v%d" % (a + r, a + r, vRr(T, lohi))) for r in range(4)]
            d = a - 2 * t if t < 2 else a
            p += [cvt(d, a), cvt(d + 1, a + 2)]
        p.append(I("ds_write_b128 v%d, %s offset:%d" % (vOW4, vr(OACC(T, lohi, 0), 4), off), rd=["O"]))
        p.append(I("ds_write_b64 v%d, %s offset:%d" % (vOW2, vr(OACC(T, lohi, 2), 2), off), rd=["O"]))
    return p

def wop_read():
    return [I("ds_read_b128 %s, v%d offset:%d" % (vr(WOP_REG[f], 4), vWP, f * 1024)) for f in range(8)]

def barrier():
    return [I("s_waitcnt vmcnt(0) lgkmcnt(0)", wr=["X", "O"]), I("s_barrier", rd=["X", "O"], wr=["X", "O"])]

NT = " nt" if OPT["nt"] else ""
def proj(ob):
    p = []
    for qs in range(4):
        T, lohi = qs >> 1, qs & 1
        acc = R + 48 + 12 * (qs & 1)
        for ks in range(6):
            r = ring.get()
            p.append(I("ds_read_b128 %s, v%d offset:%d" % (vr(r, 4), vOR, ob * 0x8000 + qs * 6144 + ks * 1024), rd=["O"]))
            for t in range(3):
                d = vr(acc + 4 * t, 4)
                p.append(I("%s %s, %s, %s, %s" % (M16, d, WO(t, ks), vr(r, 4), d if ks else "0")))
        p += [cvt(acc + i, acc + 2 * i) for i in range(4)]
        p += [cvt(acc + 8, acc + 8), cvt(acc + 9, acc + 10)]
        so = sSt + 2 * lohi + T
        p.append(I("buffer_store_dwordx4 %s, v%d, %s, s%d offen%s" % (vr(acc, 4), vST4, sr(sO, 4), so, NT)))
        p.append(I("buffer_store_dwordx2 %s, v%d, %s, s%d offen%s" % (vr(acc + 8, 2), vST2, sr(sO, 4), so, NT)))
    return p

def rl(s, lane): return I("v_readlane_b32 s%d, v%d, %d" % (s, vTAB, lane))

def xdma(e, buf, srd):
    p = [rl(sD0, e), rl(sD1, 16 + e), rl(sDd, 32 + e),
         I("v_mad_i32_i24 v%d, v%d, s%d, v%d" % (vDMA, vDD, sDd, vDMA))]
    for half in range(2):
        for cg in range(3):
            p.append(I("s_add_u32 m0, s%d, %d" % (sM0, buf * 0x8000 + half * 4 * 3072 + cg * 896)))
            p.append(I("buffer_load_dwordx4 v%d, %s, s%d offen offset:%d%s lds" % (vDMA, sr(srd, 4), sD0 + half, cg * 128, NT), rd=["X"]))
    return p

def win_mask(e, split=False):
    p = [rl(sFW, 48 + e), I("v_mov_b32 v%d, s%d" % (vMK, sFW)),
         I("v_cndmask_b32 v%d, 0, v%d, %s" % (vMK, vMK, sr(sMB, 2)))]
    if split:
        p += [I("v_or_b32 v%d, s%d, v%d" % (vT, sFH, vMK)),
              I("v_cndmask_b32 v%d, v%d, v%d, %s" % (vMK2, vT, vMK, sr(sMA, 2))),
              I("v_cndmask_b32 v%d, v%d, v%d, %s" % (vMK, vMK, vT, sr(sMA, 2)))]
    return p

def win_store(e):
    return [rl(sSt, e), rl(sSt + 2, 16 + e), rl(sDs, 32 + e),
            I("s_add_u32 s%d, s%d, %d" % (sSt + 1, sSt, ROWB)), I("s_add_u32 s%d, s%d, %d" % (sSt + 3, sSt + 2, ROWB)),
            I("v_mad_i32_i24 v%d, v%d, s%d, v%d" % (vST4, vDS, sDs, vST4)),
            I("v_mad_i32_i24 v%d, v%d, s%d, v%d" % (vST2, vDS, sDs, vST2))]

def prefetch(buf):
    regs, p = [], []
    for ks in range(OPT["pf"]):
        r, ins = xa_read(0, ks, buf); regs.append(r); p.append(ins)
    return regs, p

def setdl(p, dl):
    for c in p:
        c.dl = dl
    return p

def body(par, pre):
    nb = 1 - par
    p = win_mask(par) + win_store(par) + setdl(xdma(par + 2, par, sXB if par else sXA), 1200)
    p += softmax(0, False) + qk(0, nb, pre) + pv(0) + cvt_qk(0)
    p += softmax(1, False) + qk(1, nb) + owrite(0, par) + pv(1) + cvt_qk(1)
    p += owrite(1, par) + wop_read() + vgemm(nb) + barrier() + proj(par)
    regs, pf = prefetch(par)
    p += sgemm() + pf
    if par: p.append(I("v_mov_b32_dpp v%d, v%d row_shl:2 row_mask:0xf bank_mask:0xf" % (vTAB, vTAB)))
    return p, regs

def last():
    p = win_mask(0, True) + win_store(0)
    p += softmax(0, True) + pv(0) + softmax(1, True) + owrite(0, 0) + pv(1) + owrite(1, 0) + wop_read()
    p += barrier() + proj(0)
    return p

def prologue():
    p = []
    def e(t): p.append(I(t))
    vm = []
    def issue(t, tag): e(t); vm.append(tag); assert len(vm) <= 63
    def vwait(tag):
        k = max(i for i, x in enumerate(vm) if x == tag)
        e("s_waitcnt vmcnt(%d)" % (len(vm) - 1 - k)); del vm[:k + 1]
    e("s_load_dwordx4 s[52:55], s[0:1], 0"); e("s_load_dwordx4 s[56:59], s[0:1], 16"); e("s_load_dwordx2 s[60:61], s[0:1], 48")
    L, t0, t1, t2, t3, t4, t5 = 40, 41, 42, 43, 44, 45, 46
    e("v_and_b32 v%d, 63, v0" % L); e("v_lshrrev_b32 v%d, 6, v0" % t0); e("v_readfirstlane_b32 s%d, v%d" % (sH, t0))
    e("v_and_b32 v%d, 15, v%d" % (t0, L)); e("v_min_u32 v%d, 8, v%d" % (t0, t0))
    e("v_lshlrev_b32 v%d, 8, v%d" % (t1, t0)); e("v_add_u32 v%d, s2, v%d" % (t1, t1))
    e("v_mul_u32_u24 v%d, 43691, v%d" % (t2, t1)); e("v_lshrrev_b32 v%d, 21, v%d" % (t2, t2))
    e("v_mul_u32_u24 v%d, 48, v%d" % (t3, t2)); e("v_sub_u32 v%d, v%d, v%d" % (t1, t1, t3))
    e("v_mul_u32_u24 v%d, 3072, v%d" % (t3, t1)); e("v_add_u32 v%d, 1536, v%d" % (t3, t3))
    e("v_cmp_ne_u32 vcc, 47, v%d" % t1); e("v_cndmask_b32 v%d, 0, v%d, vcc" % (t3, t3))
    e("v_cndmask_b32 v%d, 1, 0, vcc" % t4)
    e("v_mul_u32_u24 v%d, %d, v%d" % (t5, 8 * ROWB, t2)); e("v_add_u32 v%d, v%d, v%d" % (t3, t3, t5))
    e("v_add_u32 v%d, %d, v%d" % (vTAB, 4 * ROWB, t3))
    e("v_add_u32 v%d, %d, v%d" % (t3, 8 * ROWB, t3)); e("v_subrev_u32 v%d, %d, v%d" % (t5, XB, t3))
    e("v_cmp_eq_u32 vcc, 47, v%d" % t2); e("v_cndmask_b32 v%d, v%d, v%d, vcc" % (t3, t3, t5))
    e("v_cmp_lt_u32 vcc, 15, v%d" % L); e("v_cndmask_b32 v%d, v%d, v%d, vcc" % (vTAB, vTAB, t3))
    e("v_cmp_eq_u32 vcc, 15, v%d" % t1); e("v_cndmask_b32 v%d, 0, 1, vcc" % t3)
    e("v_min_u32 v%d, v%d, v%d" % (t3, t3, t0)); e("v_sub_u32 v%d, v%d, v%d" % (t3, t4, t3))
    e("v_cmp_lt_u32 vcc, 31, v%d" % L); e("v_cndmask_b32 v%d, v%d, v%d, vcc" % (vTAB, vTAB, t3))
    e("v_sub_u32 v%d, 0, v%d" % (t4, t4)); e("v_and_b32 v%d, %s, v%d" % (t4, MASKV, t4))
    e("v_cmp_lt_u32 vcc, 47, v%d" % L); e("v_cndmask_b32 v%d, v%d, v%d, vcc" % (vTAB, vTAB, t4))
    e("s_lshr_b32 s%d, s%d, 1" % (sT0, sH)); e("s_xor_b32 s%d, s%d, s%d" % (sT0, sT0, sH)); e("s_and_b32 s%d, s%d, 1" % (sT0, sT0))
    e("s_lshl_b32 s%d, s%d, 2" % (sT0, sT0)); e("s_mul_i32 s%d, s%d, %d" % (sT0 + 1, sH, ROWB)); e("s_mul_i32 s%d, s%d, 3072" % (sM0, sH))
    e("v_lshrrev_b32 v%d, 4, v%d" % (t0, L)); e("v_or_b32 v%d, s%d, v%d" % (t0, sT0, t0))
    e("v_and_b32 v%d, 7, v%d" % (t1, L)); e("v_xor_b32 v%d, v%d, v%d" % (t0, t0, t1)); e("v_lshlrev_b32 v%d, 4, v%d" % (t0, t0))
    e("v_lshrrev_b32 v%d, 3, v%d" % (t1, L)); e("v_mul_u32_u24 v%d, 384, v%d" % (t1, t1))
    e("v_add3_u32 v%d, v%d, v%d, s%d" % (vDMA, t0, t1, sT0 + 1))
    e("v_mov_b32 v%d, %d" % (t0, 380 * 384)); e("v_mov_b32 v%d, -1536" % t1)
    e("v_cmp_gt_u32 vcc, 32, v%d" % L); e("v_cndmask_b32 v%d, v%d, v%d, vcc" % (vDD, t1, t0))
    e("v_and_b32 v%d, 4, v%d" % (t2, L)); e("v_cmp_eq_u32 vcc, 0, v%d" % t2); e("v_cndmask_b32 v%d, v%d, v%d, vcc" % (vDS, t1, t0))
    e("s_waitcnt lgkmcnt(0)")
    for d, b, n in ((sXA, 52, XB), (sXB, 52, XB), (sW, 54, 192 * 1152), (sWo, 56, 192 * 384), (sRp, 58, 1800), (sO, 60, XB)):
        e("s_mov_b32 s%d, s%d" % (d, b)); e("s_mov_b32 s%d, s%d" % (d + 1, b + 1))
        e("s_mov_b32 s%d, %d" % (d + 2, n)); e("s_mov_b32 s%d, 0x00020000" % (d + 3))
        if d == sXA:
            for c in xdma(0, 0, sXA):
                p.append(c)
                if c.kind == "dma": vm.append("x0")
    vW, vWo = 48, 52
    e("s_mul_i32 s%d, s%d, 96" % (sT0, sH)); e("s_mul_i32 s%d, s%d, 27648" % (sStg, sH)); e("s_add_u32 s%d, s%d, 0x6000" % (sStg, sStg))
    for q in range(3):
        e("v_add_u32 v%d, %d, v%d" % (t0, 64 * q, L)); e("v_mul_u32_u24 v%d, 10923, v%d" % (t1, t0)); e("v_lshrrev_b32 v%d, 16, v%d" % (t1, t1))
        e("v_mul_u32_u24 v%d, 6, v%d" % (t2, t1)); e("v_sub_u32 v%d, v%d, v%d" % (t0, t0, t2))
        e("v_lshlrev_b32 v%d, 4, v%d" % (t0, t0)); e("v_add_u32 v%d, s%d, v%d" % (t0, sT0, t0))
        e("v_mul_u32_u24 v%d, 1152, v%d" % (t2, t1)); e("v_add_u32 v%d, v%d, v%d" % (vW + q, t0, t2))
        e("v_mul_u32_u24 v%d, 384, v%d" % (t2, t1)); e("v_add_u32 v%d, v%d, v%d" % (vWo + q, t0, t2))
    def wdma(i):
        e("s_mov_b32 s%d, %d" % (sT0 + 1, 36864 * i))
        for sec in range(3):
            for q in range(3):
                e("s_add_u32 m0, s%d, %d" % (sStg, (i % 3) * 9216 + sec * (3072 - 384) + q * 1024))
                issue("buffer_load_dwordx4 v%d, %s, s%d offen offset:%d lds" % (vW + q, sr(sW, 4), sT0 + 1, sec * 384), "w%d" % i)
    for i in range(3): wdma(i)
    g, i16, rr, cc, hh, b4, xx, aa = 56, 57, 58, 59, 60, 61, 62, 63
    vTq, vTq1, vTv, vTo1, vTo2, vBo = 64, 65, 66, 67, 68, 69
    e("v_lshrrev_b32 v%d, 4, v%d" % (g, L)); e("v_bfe_u32 v%d, v%d, 2, 2" % (rr, L)); e("v_and_b32 v%d, 3, v%d" % (cc, L))
    e("v_lshrrev_b32 v%d, 5, v%d" % (hh, L)); e("v_bfe_u32 v%d, v%d, 4, 1" % (b4, L))
    e("v_and_b32 v%d, 7, v%d" % (xx, L)); e("v_bfe_u32 v%d, v%d, 3, 2" % (aa, L))
    e("v_mul_u32_u24 v%d, 30, v%d" % (t0, aa)); e("v_lshlrev_b32 v%d, 2, v%d" % (t1, hh)); e("v_sub_u32 v%d, v%d, v%d" % (t0, t0, t1))
    e("v_add3_u32 v%d, v%d, v%d, 4" % (t0, t0, xx)); e("s_lshl_b32 s%d, s%d, 1" % (sT0 + 1, sH))
    e("v_lshl_add_u32 v%d, v%d, 3, s%d" % (vBo, t0, sT0 + 1))
    for i in range(36): e("v_mov_b32 v%d, 0" % (BE + i))
    bias = []
    for i in range(36):
        G = -2 * (i >> 2) if i < 16 else 1 - 2 * ((i - 16) >> 2)
        bias.append("buffer_load_short_d16_hi v%d, v%d, %s, 0 offen offset:%d" % (BE + i, vBo, sr(sRp, 4), ((G + 7) * 15 + 3 - (i & 3)) * 8))
    for b in bias[:24]: issue(b, "b")
    e("v_lshl_add_u32 v%d, v%d, 3, v%d" % (t0, hh, rr)); e("v_mul_u32_u24 v%d, 96, v%d" % (t0, t0))
    e("v_lshl_add_u32 v%d, v%d, 3, s%d" % (t1, cc, sStg))
    e("v_add_u32 v%d, v%d, v%d" % (t0, t0, t1)); e("v_lshl_add_u32 v%d, v%d, 5, v%d" % (vTq, b4, t0))
    e("v_mul_u32_u24 v%d, 3008, v%d" % (t2, b4)); e("v_add_u32 v%d, v%d, v%d" % (vTq1, t0, t2))
    e("v_lshl_add_u32 v%d, v%d, 3, v%d" % (t0, g, rr)); e("v_mul_u32_u24 v%d, 96, v%d" % (t0, t0)); e("v_add_u32 v%d, v%d, v%d" % (vTv, t0, t1))
    e("v_lshl_add_u32 v%d, v%d, 2, v%d" % (t0, g, rr)); e("v_mul_u32_u24 v%d, 96, v%d" % (t0, t0)); e("v_add_u32 v%d, v%d, v%d" % (vTo2, t0, t1))
    e("v_lshl_add_u32 v%d, v%d, 3, v%d" % (vTo1, cc, vTo2))
    e("v_lshrrev_b32 v%d, 1, v%d" % (t0, xx)); e("v_and_b32 v%d, 1, v%d" % (t1, aa)); e("v_lshl_or_b32 v%d, v%d, 2, v%d" % (t0, t1, t0))
    e("v_xor_b32 v%d, v%d, v%d" % (t0, t0, hh))
    e("v_mul_u32_u24 v%d, 6144, v%d" % (t1, aa)); e("v_lshl_add_u32 v%d, v%d, 7, v%d" % (t1, xx, t1))
    for j in range(4):
        e("v_xor_b32 v%d, %d, v%d" % (t2, 2 * j, t0)); e("v_lshl_add_u32 v%d, v%d, 4, v%d" % (vA + j, t2, t1))
    e("v_bfe_u32 v%d, v%d, 2, 1" % (t3, L)); e("v_bfe_u32 v%d, v%d, 3, 1" % (t4, L)); e("v_lshl_add_u32 v%d, v%d, 2, v%d" % (t5, t4, cc))
    e("v_lshrrev_b32 v%d, 1, v%d" % (t0, t5)); e("v_lshl_or_b32 v%d, v%d, 2, v%d" % (t0, t3, t0)); e("v_xor_b32 v%d, v%d, v%d" % (t0, t0, g))
    e("v_mul_u32_u24 v%d, 3072, v%d" % (t1, t3)); e("v_lshl_add_u32 v%d, v%d, 7, v%d" % (t1, t5, t1))
    for j in range(2):
        e("v_xor_b32 v%d, %d, v%d" % (t2, 4 * j, t0)); e("v_lshl_add_u32 v%d, v%d, 4, v%d" % (vB + j, t2, t1))
    e("v_lshlrev_b32 v%d, 4, v%d" % (t0, L)); e("v_add_u32 v%d, 0x10000, v%d" % (vOR, t0))
    e("s_lshl_b32 s%d, s%d, 10" % (sT0 + 1, sH)); e("v_add_u32 v%d, s%d, v%d" % (vOW4, sT0 + 1, vOR))
    e("s_lshl_b32 s%d, s%d, 13" % (sT0 + 1, sH)); e("s_add_u32 s%d, s%d, 0x20000" % (sT0 + 1, sT0 + 1)); e("v_add_u32 v%d, s%d, v%d" % (vWP, sT0 + 1, t0))
    e("s_lshr_b32 s%d, s%d, 1" % (sT0 + 1, sH)); e("s_lshl_b32 s%d, s%d, 10" % (sT0 + 1, sT0 + 1)); e("s_and_b32 s%d, s%d, 1" % (sC, sH))
    e("s_lshl_b32 s%d, s%d, 3" % (sC, sC)); e("s_add_u32 s%d, s%d, s%d" % (sT0 + 1, sT0 + 1, sC)); e("s_add_u32 s%d, s%d, 4096" % (sT0 + 1, sT0 + 1))
    e("v_add_u32 v%d, s%d, v%d" % (vOW2, sT0 + 1, vOR))
    e("v_mul_u32_u24 v%d, %d, v%d" % (t0, 2 * ROWB, t4)); e("v_mul_u32_u24 v%d, 384, v%d" % (t1, xx))
    e("v_add3_u32 v%d, v%d, v%d, s%d" % (t0, t0, t1, sT0))
    e("v_lshl_add_u32 v%d, v%d, 4, v%d" % (vST4, g, t0)); e("v_lshl_add_u32 v%d, v%d, 3, v%d" % (vST2, g, t0)); e("v_add_u32 v%d, 64, v%d" % (vST2, vST2))
    e("s_mov_b32 s%d, %s" % (sC, f32(48 ** -0.5 * LOG2E)))
    e("s_mov_b32 s%d, 0xf0f0f0f0" % sMB); e("s_mov_b32 s%d, 0x0f0f0f0f" % (sMB + 1))
    e("s_mov_b32 s%d, 0xffff0000" % sMA); e("s_mov_b32 s%d, 0xffff0000" % (sMA + 1))
    e("s_cmp_ge_u32 s2, 208"); e("s_cselect_b32 s%d, %s, 0" % (sFH, MASKV)); e("s_mov_b32 s%d, 0" % sCnt)
    def tr(dst, addr, off): e("ds_read_b64_tr_b16 %s, v%d offset:%d" % (dst, addr, off))
    def consume(i):
        vwait("w%d" % i)
        sl = (i % 3) * 9216
        for k2 in range(2):
            for mt in range(3):
                for u in range(2):
                    tr(ar(((2 * i + k2) * 3 + mt) * 4 + 2 * u, 2), vTq1 if mt == 1 else vTq,
                       sl + (16 * k2 + 4 * u) * 96 + (0, 64, 3072 + 32)[mt])
        for t in range(3):
            for u in range(2):
                tr(ar(144 + (i * 3 + t) * 4 + 2 * u, 2), vTv, sl + 6144 + 4 * u * 96 + 32 * t)
        e("s_waitcnt lgkmcnt(0)")
    consume(0); wdma(3)
    for b in bias[24:]: issue(b, "b")
    consume(1); wdma(4); consume(2); wdma(5); consume(3); consume(4)
    for q in range(18):
        if q % 3 == 0: e("s_mov_b32 s%d, %d" % (sT0 + 1, 12288 * (q // 3)))
        e("s_add_u32 m0, s%d, %d" % (sStg, q * 1024))
        issue("buffer_load_dwordx4 v%d, %s, s%d offen lds" % (vWo + q % 3, sr(sWo, 4), sT0 + 1), "wo")
    consume(5)
    for i in range(36): e("v_mul_f32 v%d, %s, v%d" % (BE + i, f32(48 ** 0.5), BE + i))
    vwait("wo")
    for ks in range(6):
        for t in range(3):
            f = ks * 3 + t
            for u in range(2):
                row = 48 * ks + 16 * u if ks < 4 else 48 * (2 * (ks - 4) + u) + 32
                dst = ar(216 + 4 * f + 2 * u, 2) if f < 10 else vr(72 + 4 * (f - 10) + 2 * u, 2)
                tr(dst, vTo1 if t < 2 else vTo2, row * 96 + (8 * t if t < 2 else 64))
    e("s_waitcnt vmcnt(0) lgkmcnt(0)"); e("s_barrier")
    for f in range(8): e("ds_write_b128 v%d, %s offset:%d" % (vWP, vr(72 + 4 * f, 4), f * 1024))
    p += xdma(1, 1, sXA)
    return p

def pre():
    p = qk(0, 0) + cvt_qk(0) + qk(1, 0) + cvt_qk(1) + vgemm(0) + barrier()
    regs, pf = prefetch(1)
    return p + sgemm() + pf, regs

def sch(p, hist, name):
    if OPT["sched"]:
        sys.stderr.write(name + " ")
        so = sys.stdout; sys.stdout = sys.stderr
        out, st = schedule(p, hist, verbose=True, slack=OPT["slack"])
        sys.stdout = so
    else:
        out = linear(p, hist)
    return out + [I("s_waitcnt lgkmcnt(0)")]

def main():
    pro = linear(prologue())
    ring.i = 6 - (48 + OPT["pf"]) % 6 + OPT["pf"]
    ring.i = 0
    pp, regs = pre()
    r0 = ring.i
    pr = sch(pp, pro, "pre")
    tailB = []
    for it in range(2):
        ring.i = r0
        pa, regsA = body(0, regs)
        pb, regsB = body(1, regsA)
        assert regsB == regs
        A = sch(pa, tailB if it else pr, "A")
        B = sch(pb, A, "B")
        ctl = [I("s_add_u32 s%d, s%d, 1" % (sCnt, sCnt)), I("s_cmp_eq_u32 s%d, 3" % sCnt),
               I("s_cselect_b32 s%d, 0, s%d" % (sXB + 2, sXB + 2)), I("s_cmp_lt_u32 s%d, 4" % sCnt), I("s_cbranch_scc1 LOOP")]
        tailB = B + ctl
    la = sch(last(), tailB, "last")
    pad = [I("s_nop 7"), I("s_nop 3")]
    bad = verify(pro + pr + pad + A + tailB + A + tailB + la)
    assert not bad
    ref = open("cdna_kernels/%s.s.ref" % NAME).read().split("\n")
    head = [l for l in ref if l.startswith(";") and "@launch" not in l]
    o = head + ["; @launch grid=(256,1,1) block=(256,1,1) lds=163840",
         '.amdgcn_target "amdgcn-amd-amdhsa--gfx950"', ".text", ".globl %s_kernel" % NAME, ".p2align 8",
         ".type %s_kernel,@function" % NAME, "%s_kernel:" % NAME,
         "    s_cmp_ge_u32 s2, 256", "    s_cbranch_scc1 DONE"]
    def put(seq): o.extend("    " + c.text for c in seq)
    put(pro); put(pr); put(pad); o.append(".p2align 5"); o.append("LOOP:"); put(A); put(tailB); put(la)
    o += ["    s_waitcnt vmcnt(0)", "DONE:", "    s_endpgm", '.section .rodata,"a"', ".p2align 6", ".amdhsa_kernel %s_kernel" % NAME,
          "  .amdhsa_next_free_vgpr 512", "  .amdhsa_next_free_sgpr 102", "  .amdhsa_accum_offset 256",
          "  .amdhsa_group_segment_fixed_size 0", "  .amdhsa_kernarg_size 72", "  .amdhsa_user_sgpr_count 2",
          "  .amdhsa_user_sgpr_kernarg_segment_ptr 1", "  .amdhsa_system_sgpr_workgroup_id_x 1", ".end_amdhsa_kernel", ""]
    open(sys.argv[1], "w").write("\n".join(o))

main()
```

```python
import sys, struct, math
sys.path.insert(0, "gen")
from asmlib import *

NAME = "standalone__window_attn_swin__vision"
OPT = dict(dbg=0, sched=1, ones=0, slack=0, nt=0, pf=4)
for a in sys.argv[2:]:
    k, v = a.split("=")
    OPT[k] = int(v)

def f32(x):
    return "0x%08x" % struct.unpack("<I", struct.pack("<f", x))[0]

ROWB, XB = 147456, 56623104
LOG2E = math.log2(math.e)
MASKV = f32(-100.0 * LOG2E)
BE, BO = 4, 20
def S(T, Tp): return 40 + 32 * T + 16 * Tp
R, VP, RING, OX = 104, 176, 200, 224
vA, vB, vOR, vOW4, vOW2, vWP = 232, 236, 238, 239, 240, 241
vDMA, vST4, vST2, vDD, vDS, vTAB, vMK, vMK2 = 242, 243, 244, 245, 246, 247, 248, 249
vM, vT, vAl, vSum, vM2, vAh = 250, 251, 252, 253, 254, 255
def vRr(T, lohi): return 2 * T + lohi
sXA, sXB, sO, sW, sWo, sRp = 4, 8, 12, 16, 20, 24
sH, sC, sCnt, sM0, sSt, sD0, sD1, sDd, sDs, sFW, sFH = 28, 29, 30, 31, 32, 36, 37, 38, 39, 40, 41
sMB, sMA, sT0, sStg = 42, 44, 46, 48
def vr(b, n): return "v[%d:%d]" % (b, b + n - 1)
def ar(b, n): return "a[%d:%d]" % (b, b + n - 1)
def sr(b, n): return "s[%d:%d]" % (b, b + n - 1)
def WQK(mt, ks): return ar((ks * 3 + mt) * 4, 4)
def WV(t, ks): return ar(144 + (ks * 3 + t) * 4, 4)
WOP_REG = [S(0, 1), S(0, 1) + 4, S(0, 1) + 8, S(0, 1) + 12, S(1, 0), S(1, 0) + 4, S(1, 1), S(1, 1) + 4]
def WO(t, ks):
    f = ks * 3 + t
    return ar(216 + 4 * f, 4) if f < 10 else vr(WOP_REG[f - 10], 4)
def OACC(T, lohi, t):
    if t < 2: return S(T, lohi) + 8 + 4 * t
    return (OX if T == 0 else S(0, 0)) + 4 * lohi
M32, M16 = "v_mfma_f32_32x32x16_bf16", "v_mfma_f32_16x16x32_bf16"

class Ring:
    def __init__(self): self.i = 0
    def get(self):
        r = RING + 4 * (self.i % 6); self.i += 1
        return r
ring = Ring()

def xa_read(T, ks, buf, **kw):
    r = ring.get()
    j = (ks & 3) ^ (2 * T)
    return r, I("ds_read_b128 %s, v%d offset:%d" % (vr(r, 4), vA + j, buf * 0x8000 + T * 3072 + (ks >> 2) * 1024), rd=["X"], **kw)

def qk(T, buf, pre=()):
    p, acc = [], R + 24 * T
    for ks in range(12):
        if ks < len(pre): r = pre[ks]
        else:
            r, ins = xa_read(T, ks, buf); p.append(ins)
        for mt in range(3):
            d = vr(acc + 16 * mt, 16)
            p.append(I("%s %s, %s, %s, %s" % (M32, d, WQK(mt, ks), vr(r, 4), d if ks else "0")))
    return p

def cvt(d, a, b=None):
    return I("v_cvt_pk_bf16_f32 v%d, v%d, v%d" % (d, a, a + 1 if b is None else b))

def cvt_qk(T):
    b = R + 24 * T
    return [cvt(b + i, b + 2 * i) for i in range(24)]

def vgemm(buf):
    p = []
    for vt in range(4):
        acc = R + 48 + 12 * (vt & 1)
        for ks in range(6):
            r = ring.get()
            j = (ks & 1) ^ (vt & 1)
            p.append(I("ds_read_b128 %s, v%d offset:%d" % (vr(r, 4), vB + j, buf * 0x8000 + vt * 6144 + (ks >> 1) * 1024), rd=["X"]))
            for t in range(3):
                d = vr(acc + 4 * t, 4)
                p.append(I("%s %s, %s, %s, %s" % (M16, d, vr(r, 4), WV(t, ks), d if ks else "0")))
        for t in range(3):
            o = VP + ((vt >> 1) * 3 + t) * 4 + (vt & 1) * 2
            p += [cvt(o, acc + 4 * t), cvt(o + 1, acc + 4 * t + 2)]
    return p

def sgemm():
    p = []
    for T in range(2):
        for c in range(3):
            for Tp in range(2):
                d = vr(S(T, Tp), 16)
                bias = vr(BE, 16) if T == Tp else vr(BO if T > Tp else BO + 4, 16)
                p.append(I("%s %s, %s, %s, %s" % (M32, d, vr(R + 24 * Tp + 12 + 4 * c, 4), vr(R + 24 * T + 4 * c, 4), d if c else bias)))
    return p

def maxchain(dst, regs):
    p = [I("v_max3_f32 v%d, v%d, v%d, v%d" % (dst, regs[0], regs[1], regs[2]))]
    i = 3
    while i + 1 < len(regs):
        p.append(I("v_max3_f32 v%d, v%d, v%d, v%d" % (dst, dst, regs[i], regs[i + 1]))); i += 2
    if i < len(regs):
        p.append(I("v_max_f32 v%d, v%d, v%d" % (dst, dst, regs[i])))
    return p

def softmax(T, split):
    p = []
    lo = [S(T, Tp) + r for Tp in range(2) for r in range(8)]
    hi = [x + 8 for x in lo]
    if split:
        p += maxchain(vM, lo) + maxchain(vM2, hi)
        p += [I("v_fma_f32 v%d, v%d, s%d, v%d" % (vM, vM, sC, vMK)), I("v_fma_f32 v%d, v%d, s%d, v%d" % (vM2, vM2, sC, vMK2)),
              I("v_max_f32 v%d, v%d, v%d" % (vM, vM, vM2))]
    else:
        p += maxchain(vM, [S(T, 0) + r for r in range(32)])
        p += [I("v_fma_f32 v%d, v%d, s%d, v%d" % (vM, vM, sC, vMK))]
    p += [I("v_mov_b32 v%d, v%d" % (vT, vM)), I("v_permlane32_swap_b32 v%d, v%d" % (vM, vT)),
          I("v_max_f32 v%d, v%d, v%d" % (vM, vM, vT)), I("v_sub_f32 v%d, v%d, v%d" % (vAl, vMK, vM))]
    if split: p.append(I("v_sub_f32 v%d, v%d, v%d" % (vAh, vMK2, vM)))
    first = True
    for k in range(8):
        for Tp in range(2):
            b = S(T, Tp)
            for r in (2 * k, 2 * k + 1):
                p.append(I("v_fma_f32 v%d, v%d, s%d, v%d" % (b + r, b + r, sC, vAh if (split and r >= 8) else vAl)))
                p.append(I("v_exp_f32 v%d, v%d" % (b + r, b + r)))
            if first:
                p.append(I("v_add_f32 v%d, v%d, v%d" % (vSum, b + 2 * k, b + 2 * k + 1))); first = False
            else:
                p += [I("v_add_f32 v%d, v%d, v%d" % (vSum, vSum, b + r)) for r in (2 * k, 2 * k + 1)]
            p.append(cvt(b + k, b + 2 * k))
        p.append(I("v_permlane16_swap_b32 v%d, v%d" % (S(T, 0) + k, S(T, 1) + k)))
    r0, r1 = vRr(T, 0), vRr(T, 1)
    p += [I("v_mov_b32 v%d, v%d" % (vT, vSum)), I("v_permlane32_swap_b32 v%d, v%d" % (vSum, vT)),
          I("v_add_f32 v%d, v%d, v%d" % (vSum, vSum, vT)), I("v_rcp_f32 v%d, v%d" % (r0, vSum)),
          I("v_mov_b32 v%d, v%d" % (r1, r0)), I("v_permlane16_swap_b32 v%d, v%d" % (r0, r1))]
    return p

def pv(T):
    p = []
    for s in range(2):
        for lohi in range(2):
            for t in range(3):
                d = vr(OACC(T, lohi, t), 4)
                p.append(I("%s %s, %s, %s, %s" % (M16, d, vr(VP + (s * 3 + t) * 4, 4), vr(S(T, lohi) + 4 * s, 4), d if s else "0")))
    return p

def owrite(T, ob):
    p = []
    for lohi in range(2):
        off = ob * 0x8000 + (2 * T + lohi) * 6144
        for t in range(3):
            a = OACC(T, lohi, t)
            p += [I("v_mul_f32 v%d, v%d, v%d" % (a + r, a + r, vRr(T, lohi))) for r in range(4)]
            d = a - 2 * t if t < 2 else a
            p += [cvt(d, a), cvt(d + 1, a + 2)]
        p.append(I("ds_write_b128 v%d, %s offset:%d" % (vOW4, vr(OACC(T, lohi, 0), 4), off), rd=["O"]))
        p.append(I("ds_write_b64 v%d, %s offset:%d" % (vOW2, vr(OACC(T, lohi, 2), 2), off), rd=["O"]))
    return p

def wop_read():
    return [I("ds_read_b128 %s, v%d offset:%d" % (vr(WOP_REG[f], 4), vWP, f * 1024)) for f in range(8)]

def barrier():
    return [I("s_waitcnt vmcnt(0) lgkmcnt(0)", wr=["X", "O"]), I("s_barrier", rd=["X", "O"], wr=["X", "O"])]

NT = " nt" if OPT["nt"] else ""
def proj(ob):
    p = []
    for qs in range(4):
        T, lohi = qs >> 1, qs & 1
        acc = R + 48 + 12 * (qs & 1)
        for ks in range(6):
            r = ring.get()
            p.append(I("ds_read_b128 %s, v%d offset:%d" % (vr(r, 4), vOR, ob * 0x8000 + qs * 6144 + ks * 1024), rd=["O"]))
            for t in range(3):
                d = vr(acc + 4 * t, 4)
                p.append(I("%s %s, %s, %s, %s" % (M16, d, WO(t, ks), vr(r, 4), d if ks else "0")))
        p += [cvt(acc + i, acc + 2 * i) for i in range(4)]
        p += [cvt(acc + 8, acc + 8), cvt(acc + 9, acc + 10)]
        so = sSt + 2 * lohi + T
        p.append(I("buffer_store_dwordx4 %s, v%d, %s, s%d offen%s" % (vr(acc, 4), vST4, sr(sO, 4), so, NT)))
        p.append(I("buffer_store_dwordx2 %s, v%d, %s, s%d offen%s" % (vr(acc + 8, 2), vST2, sr(sO, 4), so, NT)))
    return p

def rl(s, lane): return I("v_readlane_b32 s%d, v%d, %d" % (s, vTAB, lane))

def xdma(e, buf, srd):
    p = [rl(sD0, e), rl(sD1, 16 + e), rl(sDd, 32 + e),
         I("v_mad_i32_i24 v%d, v%d, s%d, v%d" % (vDMA, vDD, sDd, vDMA))]
    for half in range(2):
        for cg in range(3):
            p.append(I("s_add_u32 m0, s%d, %d" % (sM0, buf * 0x8000 + half * 4 * 3072 + cg * 896)))
            p.append(I("buffer_load_dwordx4 v%d, %s, s%d offen offset:%d%s lds" % (vDMA, sr(srd, 4), sD0 + half, cg * 128, NT), rd=["X"]))
    return p

def win_mask(e, split=False):
    p = [rl(sFW, 48 + e), I("v_mov_b32 v%d, s%d" % (vMK, sFW)),
         I("v_cndmask_b32 v%d, 0, v%d, %s" % (vMK, vMK, sr(sMB, 2)))]
    if split:
        p += [I("v_or_b32 v%d, s%d, v%d" % (vT, sFH, vMK)),
              I("v_cndmask_b32 v%d, v%d, v%d, %s" % (vMK2, vT, vMK, sr(sMA, 2))),
              I("v_cndmask_b32 v%d, v%d, v%d, %s" % (vMK, vMK, vT, sr(sMA, 2)))]
    return p

def win_store(e):
    return [rl(sSt, e), rl(sSt + 2, 16 + e), rl(sDs, 32 + e),
            I("s_add_u32 s%d, s%d, %d" % (sSt + 1, sSt, ROWB)), I("s_add_u32 s%d, s%d, %d" % (sSt + 3, sSt + 2, ROWB)),
            I("v_mad_i32_i24 v%d, v%d, s%d, v%d" % (vST4, vDS, sDs, vST4)),
            I("v_mad_i32_i24 v%d, v%d, s%d, v%d" % (vST2, vDS, sDs, vST2))]

def prefetch(buf):
    regs, p = [], []
    for ks in range(OPT["pf"]):
        r, ins = xa_read(0, ks, buf); regs.append(r); p.append(ins)
    return regs, p

def setdl(p, dl):
    for c in p:
        c.dl = dl
    return p

def body(par, pre):
    nb = 1 - par
    p = win_mask(par) + win_store(par) + setdl(xdma(par + 2, par, sXB if par else sXA), 1200)
    p += softmax(0, False) + qk(0, nb, pre) + pv(0) + cvt_qk(0)
    p += softmax(1, False) + qk(1, nb) + owrite(0, par) + pv(1) + cvt_qk(1)
    p += owrite(1, par) + wop_read() + vgemm(nb) + barrier() + proj(par)
    regs, pf = prefetch(par)
    p += sgemm() + pf
    if par: p.append(I("v_mov_b32_dpp v%d, v%d row_shl:2 row_mask:0xf bank_mask:0xf" % (vTAB, vTAB)))
    return p, regs

def last():
    p = win_mask(0, True) + win_store(0)
    p += softmax(0, True) + pv(0) + softmax(1, True) + owrite(0, 0) + pv(1) + owrite(1, 0) + wop_read()
    p += barrier() + proj(0)
    return p

def prologue():
    p = []
    def e(t): p.append(I(t))
    vm = []
    def issue(t, tag): e(t); vm.append(tag); assert len(vm) <= 63
    def vwait(tag):
        k = max(i for i, x in enumerate(vm) if x == tag)
        e("s_waitcnt vmcnt(%d)" % (len(vm) - 1 - k)); del vm[:k + 1]
    if OPT["dbg"]: e("s_memrealtime s[74:75]")
    p.extend(stamp(0))
    e("s_load_dwordx4 s[52:55], s[0:1], 0"); e("s_load_dwordx4 s[56:59], s[0:1], 16"); e("s_load_dwordx2 s[60:61], s[0:1], 48")
    L, t0, t1, t2, t3, t4, t5 = 40, 41, 42, 43, 44, 45, 46
    e("v_and_b32 v%d, 63, v0" % L); e("v_lshrrev_b32 v%d, 6, v0" % t0); e("v_readfirstlane_b32 s%d, v%d" % (sH, t0))
    e("v_and_b32 v%d, 15, v%d" % (t0, L)); e("v_min_u32 v%d, 8, v%d" % (t0, t0))
    e("v_lshlrev_b32 v%d, 8, v%d" % (t1, t0)); e("v_add_u32 v%d, s2, v%d" % (t1, t1))
    e("v_mul_u32_u24 v%d, 43691, v%d" % (t2, t1)); e("v_lshrrev_b32 v%d, 21, v%d" % (t2, t2))
    e("v_mul_u32_u24 v%d, 48, v%d" % (t3, t2)); e("v_sub_u32 v%d, v%d, v%d" % (t1, t1, t3))
    e("v_mul_u32_u24 v%d, 3072, v%d" % (t3, t1)); e("v_add_u32 v%d, 1536, v%d" % (t3, t3))
    e("v_cmp_ne_u32 vcc, 47, v%d" % t1); e("v_cndmask_b32 v%d, 0, v%d, vcc" % (t3, t3))
    e("v_cndmask_b32 v%d, 1, 0, vcc" % t4)
    e("v_mul_u32_u24 v%d, %d, v%d" % (t5, 8 * ROWB, t2)); e("v_add_u32 v%d, v%d, v%d" % (t3, t3, t5))
    e("v_add_u32 v%d, %d, v%d" % (vTAB, 4 * ROWB, t3))
    e("v_add_u32 v%d, %d, v%d" % (t3, 8 * ROWB, t3)); e("v_subrev_u32 v%d, %d, v%d" % (t5, XB, t3))
    e("v_cmp_eq_u32 vcc, 47, v%d" % t2); e("v_cndmask_b32 v%d, v%d, v%d, vcc" % (t3, t3, t5))
    e("v_cmp_lt_u32 vcc, 15, v%d" % L); e("v_cndmask_b32 v%d, v%d, v%d, vcc" % (vTAB, vTAB, t3))
    e("v_cmp_eq_u32 vcc, 15, v%d" % t1); e("v_cndmask_b32 v%d, 0, 1, vcc" % t3)
    e("v_min_u32 v%d, v%d, v%d" % (t3, t3, t0)); e("v_sub_u32 v%d, v%d, v%d" % (t3, t4, t3))
    e("v_cmp_lt_u32 vcc, 31, v%d" % L); e("v_cndmask_b32 v%d, v%d, v%d, vcc" % (vTAB, vTAB, t3))
    e("v_sub_u32 v%d, 0, v%d" % (t4, t4)); e("v_and_b32 v%d, %s, v%d" % (t4, MASKV, t4))
    e("v_cmp_lt_u32 vcc, 47, v%d" % L); e("v_cndmask_b32 v%d, v%d, v%d, vcc" % (vTAB, vTAB, t4))
    e("s_lshr_b32 s%d, s%d, 1" % (sT0, sH)); e("s_xor_b32 s%d, s%d, s%d" % (sT0, sT0, sH)); e("s_and_b32 s%d, s%d, 1" % (sT0, sT0))
    e("s_lshl_b32 s%d, s%d, 2" % (sT0, sT0)); e("s_mul_i32 s%d, s%d, %d" % (sT0 + 1, sH, ROWB)); e("s_mul_i32 s%d, s%d, 3072" % (sM0, sH))
    e("v_lshrrev_b32 v%d, 4, v%d" % (t0, L)); e("v_or_b32 v%d, s%d, v%d" % (t0, sT0, t0))
    e("v_and_b32 v%d, 7, v%d" % (t1, L)); e("v_xor_b32 v%d, v%d, v%d" % (t0, t0, t1)); e("v_lshlrev_b32 v%d, 4, v%d" % (t0, t0))
    e("v_lshrrev_b32 v%d, 3, v%d" % (t1, L)); e("v_mul_u32_u24 v%d, 384, v%d" % (t1, t1))
    e("v_add3_u32 v%d, v%d, v%d, s%d" % (vDMA, t0, t1, sT0 + 1))
    e("v_mov_b32 v%d, %d" % (t0, 380 * 384)); e("v_mov_b32 v%d, -1536" % t1)
    e("v_cmp_gt_u32 vcc, 32, v%d" % L); e("v_cndmask_b32 v%d, v%d, v%d, vcc" % (vDD, t1, t0))
    e("v_and_b32 v%d, 4, v%d" % (t2, L)); e("v_cmp_eq_u32 vcc, 0, v%d" % t2); e("v_cndmask_b32 v%d, v%d, v%d, vcc" % (vDS, t1, t0))
    e("s_waitcnt lgkmcnt(0)")
    for d, b, n in ((sXA, 52, XB), (sXB, 52, XB), (sW, 54, 192 * 1152), (sWo, 56, 192 * 384), (sRp, 58, 1800), (sO, 60, XB)):
        e("s_mov_b32 s%d, s%d" % (d, b)); e("s_mov_b32 s%d, s%d" % (d + 1, b + 1))
        e("s_mov_b32 s%d, %d" % (d + 2, n)); e("s_mov_b32 s%d, 0x00020000" % (d + 3))
        if d == sXA:
            for c in xdma(0, 0, sXA):
                p.append(c)
                if c.kind == "dma": vm.append("x0")
    vW, vWo = 48, 52
    e("s_mul_i32 s%d, s%d, 96" % (sT0, sH)); e("s_mul_i32 s%d, s%d, 27648" % (sStg, sH)); e("s_add_u32 s%d, s%d, 0x6000" % (sStg, sStg))
    for q in range(3):
        e("v_add_u32 v%d, %d, v%d" % (t0, 64 * q, L)); e("v_mul_u32_u24 v%d, 10923, v%d" % (t1, t0)); e("v_lshrrev_b32 v%d, 16, v%d" % (t1, t1))
        e("v_mul_u32_u24 v%d, 6, v%d" % (t2, t1)); e("v_sub_u32 v%d, v%d, v%d" % (t0, t0, t2))
        e("v_lshlrev_b32 v%d, 4, v%d" % (t0, t0)); e("v_add_u32 v%d, s%d, v%d" % (t0, sT0, t0))
        e("v_mul_u32_u24 v%d, 1152, v%d" % (t2, t1)); e("v_add_u32 v%d, v%d, v%d" % (vW + q, t0, t2))
        e("v_mul_u32_u24 v%d, 384, v%d" % (t2, t1)); e("v_add_u32 v%d, v%d, v%d" % (vWo + q, t0, t2))
    def wdma(i):
        e("s_mov_b32 s%d, %d" % (sT0 + 1, 36864 * i))
        for sec in range(3):
            for q in range(3):
                e("s_add_u32 m0, s%d, %d" % (sStg, (i % 3) * 9216 + sec * (3072 - 384) + q * 1024))
                issue("buffer_load_dwordx4 v%d, %s, s%d offen offset:%d lds" % (vW + q, sr(sW, 4), sT0 + 1, sec * 384), "w%d" % i)
    for i in range(3): wdma(i)
    g, i16, rr, cc, hh, b4, xx, aa = 56, 57, 58, 59, 60, 61, 62, 63
    vTq, vTq1, vTv, vTo1, vTo2, vBo = 64, 65, 66, 67, 68, 69
    e("v_lshrrev_b32 v%d, 4, v%d" % (g, L)); e("v_bfe_u32 v%d, v%d, 2, 2" % (rr, L)); e("v_and_b32 v%d, 3, v%d" % (cc, L))
    e("v_lshrrev_b32 v%d, 5, v%d" % (hh, L)); e("v_bfe_u32 v%d, v%d, 4, 1" % (b4, L))
    e("v_and_b32 v%d, 7, v%d" % (xx, L)); e("v_bfe_u32 v%d, v%d, 3, 2" % (aa, L))
    e("v_mul_u32_u24 v%d, 30, v%d" % (t0, aa)); e("v_lshlrev_b32 v%d, 2, v%d" % (t1, hh)); e("v_sub_u32 v%d, v%d, v%d" % (t0, t0, t1))
    e("v_add3_u32 v%d, v%d, v%d, 4" % (t0, t0, xx)); e("s_lshl_b32 s%d, s%d, 1" % (sT0 + 1, sH))
    e("v_lshl_add_u32 v%d, v%d, 3, s%d" % (vBo, t0, sT0 + 1))
    for i in range(36): e("v_mov_b32 v%d, 0" % (BE + i))
    bias = []
    for i in range(36):
        G = -2 * (i >> 2) if i < 16 else 1 - 2 * ((i - 16) >> 2)
        bias.append("buffer_load_short_d16_hi v%d, v%d, %s, 0 offen offset:%d" % (BE + i, vBo, sr(sRp, 4), ((G + 7) * 15 + 3 - (i & 3)) * 8))
    for b in bias[:24]: issue(b, "b")
    e("v_lshl_add_u32 v%d, v%d, 3, v%d" % (t0, hh, rr)); e("v_mul_u32_u24 v%d, 96, v%d" % (t0, t0))
    e("v_lshl_add_u32 v%d, v%d, 3, s%d" % (t1, cc, sStg))
    e("v_add_u32 v%d, v%d, v%d" % (t0, t0, t1)); e("v_lshl_add_u32 v%d, v%d, 5, v%d" % (vTq, b4, t0))
    e("v_mul_u32_u24 v%d, 3008, v%d" % (t2, b4)); e("v_add_u32 v%d, v%d, v%d" % (vTq1, t0, t2))
    e("v_lshl_add_u32 v%d, v%d, 3, v%d" % (t0, g, rr)); e("v_mul_u32_u24 v%d, 96, v%d" % (t0, t0)); e("v_add_u32 v%d, v%d, v%d" % (vTv, t0, t1))
    e("v_lshl_add_u32 v%d, v%d, 2, v%d" % (t0, g, rr)); e("v_mul_u32_u24 v%d, 96, v%d" % (t0, t0)); e("v_add_u32 v%d, v%d, v%d" % (vTo2, t0, t1))
    e("v_lshl_add_u32 v%d, v%d, 3, v%d" % (vTo1, cc, vTo2))
    e("v_lshrrev_b32 v%d, 1, v%d" % (t0, xx)); e("v_and_b32 v%d, 1, v%d" % (t1, aa)); e("v_lshl_or_b32 v%d, v%d, 2, v%d" % (t0, t1, t0))
    e("v_xor_b32 v%d, v%d, v%d" % (t0, t0, hh))
    e("v_mul_u32_u24 v%d, 6144, v%d" % (t1, aa)); e("v_lshl_add_u32 v%d, v%d, 7, v%d" % (t1, xx, t1))
    for j in range(4):
        e("v_xor_b32 v%d, %d, v%d" % (t2, 2 * j, t0)); e("v_lshl_add_u32 v%d, v%d, 4, v%d" % (vA + j, t2, t1))
    e("v_bfe_u32 v%d, v%d, 2, 1" % (t3, L)); e("v_bfe_u32 v%d, v%d, 3, 1" % (t4, L)); e("v_lshl_add_u32 v%d, v%d, 2, v%d" % (t5, t4, cc))
    e("v_lshrrev_b32 v%d, 1, v%d" % (t0, t5)); e("v_lshl_or_b32 v%d, v%d, 2, v%d" % (t0, t3, t0)); e("v_xor_b32 v%d, v%d, v%d" % (t0, t0, g))
    e("v_mul_u32_u24 v%d, 3072, v%d" % (t1, t3)); e("v_lshl_add_u32 v%d, v%d, 7, v%d" % (t1, t5, t1))
    for j in range(2):
        e("v_xor_b32 v%d, %d, v%d" % (t2, 4 * j, t0)); e("v_lshl_add_u32 v%d, v%d, 4, v%d" % (vB + j, t2, t1))
    e("v_lshlrev_b32 v%d, 4, v%d" % (t0, L)); e("v_add_u32 v%d, 0x10000, v%d" % (vOR, t0))
    e("s_lshl_b32 s%d, s%d, 10" % (sT0 + 1, sH)); e("v_add_u32 v%d, s%d, v%d" % (vOW4, sT0 + 1, vOR))
    e("s_lshl_b32 s%d, s%d, 13" % (sT0 + 1, sH)); e("s_add_u32 s%d, s%d, 0x20000" % (sT0 + 1, sT0 + 1)); e("v_add_u32 v%d, s%d, v%d" % (vWP, sT0 + 1, t0))
    e("s_lshr_b32 s%d, s%d, 1" % (sT0 + 1, sH)); e("s_lshl_b32 s%d, s%d, 10" % (sT0 + 1, sT0 + 1)); e("s_and_b32 s%d, s%d, 1" % (sC, sH))
    e("s_lshl_b32 s%d, s%d, 3" % (sC, sC)); e("s_add_u32 s%d, s%d, s%d" % (sT0 + 1, sT0 + 1, sC)); e("s_add_u32 s%d, s%d, 4096" % (sT0 + 1, sT0 + 1))
    e("v_add_u32 v%d, s%d, v%d" % (vOW2, sT0 + 1, vOR))
    e("v_mul_u32_u24 v%d, %d, v%d" % (t0, 2 * ROWB, t4)); e("v_mul_u32_u24 v%d, 384, v%d" % (t1, xx))
    e("v_add3_u32 v%d, v%d, v%d, s%d" % (t0, t0, t1, sT0))
    e("v_lshl_add_u32 v%d, v%d, 4, v%d" % (vST4, g, t0)); e("v_lshl_add_u32 v%d, v%d, 3, v%d" % (vST2, g, t0)); e("v_add_u32 v%d, 64, v%d" % (vST2, vST2))
    e("s_mov_b32 s%d, %s" % (sC, f32(48 ** -0.5 * LOG2E)))
    e("s_mov_b32 s%d, 0xf0f0f0f0" % sMB); e("s_mov_b32 s%d, 0x0f0f0f0f" % (sMB + 1))
    e("s_mov_b32 s%d, 0xffff0000" % sMA); e("s_mov_b32 s%d, 0xffff0000" % (sMA + 1))
    e("s_cmp_ge_u32 s2, 208"); e("s_cselect_b32 s%d, %s, 0" % (sFH, MASKV)); e("s_mov_b32 s%d, 0" % sCnt)
    def tr(dst, addr, off): e("ds_read_b64_tr_b16 %s, v%d offset:%d" % (dst, addr, off))
    def consume(i):
        vwait("w%d" % i)
        sl = (i % 3) * 9216
        for k2 in range(2):
            for mt in range(3):
                for u in range(2):
                    tr(ar(((2 * i + k2) * 3 + mt) * 4 + 2 * u, 2), vTq1 if mt == 1 else vTq,
                       sl + (16 * k2 + 4 * u) * 96 + (0, 64, 3072 + 32)[mt])
        for t in range(3):
            for u in range(2):
                tr(ar(144 + (i * 3 + t) * 4 + 2 * u, 2), vTv, sl + 6144 + 4 * u * 96 + 32 * t)
        e("s_waitcnt lgkmcnt(0)")
    consume(0); p.extend(stamp(1)); wdma(3)
    for b in bias[24:]: issue(b, "b")
    consume(1); wdma(4); consume(2); wdma(5); consume(3); consume(4)
    for q in range(18):
        if q % 3 == 0: e("s_mov_b32 s%d, %d" % (sT0 + 1, 12288 * (q // 3)))
        e("s_add_u32 m0, s%d, %d" % (sStg, q * 1024))
        issue("buffer_load_dwordx4 v%d, %s, s%d offen lds" % (vWo + q % 3, sr(sWo, 4), sT0 + 1), "wo")
    consume(5)
    for i in range(36): e("v_mul_f32 v%d, %s, v%d" % (BE + i, f32(48 ** 0.5), BE + i))
    vwait("wo")
    for ks in range(6):
        for t in range(3):
            f = ks * 3 + t
            for u in range(2):
                row = 48 * ks + 16 * u if ks < 4 else 48 * (2 * (ks - 4) + u) + 32
                dst = ar(216 + 4 * f + 2 * u, 2) if f < 10 else vr(72 + 4 * (f - 10) + 2 * u, 2)
                tr(dst, vTo1 if t < 2 else vTo2, row * 96 + (8 * t if t < 2 else 64))
    e("s_waitcnt vmcnt(0) lgkmcnt(0)"); e("s_barrier")
    p.extend(stamp(2))
    for f in range(8): e("ds_write_b128 v%d, %s offset:%d" % (vWP, vr(72 + 4 * f, 4), f * 1024))
    p += xdma(1, 1, sXA)
    return p

def stamp(i):
    if not OPT["dbg"]: return []
    if i == "loop":
        return [I("s_memtime s[62:63]"), I("s_mov_b32 s68, s69"), I("s_mov_b32 s69, s70"), I("s_mov_b32 s70, s71"),
                I("s_waitcnt lgkmcnt(0)"), I("s_mov_b32 s71, s62")]
    return [I("s_memtime s[62:63]"), I("s_waitcnt lgkmcnt(0)"), I("s_mov_b32 s%d, s62" % (64 + i))]

def dbg_end():
    if not OPT["dbg"]: return []
    t = ["s_waitcnt vmcnt(0)"] + [c.text for c in stamp(9)]
    t += ["s_memrealtime s[76:77]", "s_load_dwordx2 s[80:81], s[0:1], 56", "s_waitcnt lgkmcnt(0)",
          "s_mov_b32 s82, 256", "s_mov_b32 s83, 0x00020000", "s_cmp_lg_u32 s%d, 0" % sH, "s_cbranch_scc1 DONE", "s_mov_b64 exec, 1",
          "v_mov_b32 v1, 0"]
    for i in range(1, 10): t.append("s_sub_u32 s%d, s%d, s64" % (64 + i, 64 + i))
    t += ["s_not_b32 s74, s74"]
    for slot, sg in ((10, 73), (11, 74), (12, 76), (13, 66), (14, 67)):
        t += ["v_mov_b32 v0, s%d" % sg, "buffer_atomic_umax v0, v1, s[80:83], 0 offen offset:%d" % (4 * slot), "s_waitcnt vmcnt(0)"]
    t += ["s_cmp_lg_u32 s2, %d" % OPT["dbg"], "s_cbranch_scc1 DONE"]
    for i in range(1, 10):
        t += ["v_mov_b32 v0, s%d" % (64 + i), "buffer_store_dword v0, v1, s[80:83], 0 offen offset:%d" % (4 * i), "s_waitcnt vmcnt(0)"]
    return t

def pre():
    p = qk(0, 0) + cvt_qk(0) + qk(1, 0) + cvt_qk(1) + vgemm(0) + barrier()
    regs, pf = prefetch(1)
    return p + sgemm() + pf, regs

def sch(p, hist, name):
    if OPT["sched"]:
        sys.stderr.write(name + " ")
        so = sys.stdout; sys.stdout = sys.stderr
        out, st = schedule(p, hist, verbose=True, slack=OPT["slack"])
        sys.stdout = so
    else:
        out = linear(p, hist)
    return out + [I("s_waitcnt lgkmcnt(0)")]

def main():
    pro = linear(prologue())
    ring.i = 6 - (48 + OPT["pf"]) % 6 + OPT["pf"]
    ring.i = 0
    pp, regs = pre()
    r0 = ring.i
    pr = sch(pp, pro, "pre") + stamp(3)
    tailB = []
    for it in range(2):
        ring.i = r0
        pa, regsA = body(0, regs)
        pb, regsB = body(1, regsA)
        assert regsB == regs
        A = sch(pa, tailB if it else pr, "A")
        B = sch(pb, A, "B")
        ctl = [I("s_add_u32 s%d, s%d, 1" % (sCnt, sCnt)), I("s_cmp_eq_u32 s%d, 3" % sCnt),
               I("s_cselect_b32 s%d, 0, s%d" % (sXB + 2, sXB + 2)), I("s_cmp_lt_u32 s%d, 4" % sCnt), I("s_cbranch_scc1 LOOP")]
        tailB = B + stamp("loop") + ctl
    la = sch(last(), tailB, "last") + stamp(8)
    pad = [I("s_nop 7"), I("s_nop 3")]
    bad = verify(pro + pr + pad + A + tailB + A + tailB + la)
    assert not bad
    ref = open("cdna_kernels/%s.s.ref" % NAME).read().split("\n")
    head = [l for l in ref if l.startswith(";") and "@launch" not in l]
    o = head + ["; @launch grid=(256,1,1) block=(256,1,1) lds=163840",
         '.amdgcn_target "amdgcn-amd-amdhsa--gfx950"', ".text", ".globl %s_kernel" % NAME, ".p2align 8",
         ".type %s_kernel,@function" % NAME, "%s_kernel:" % NAME,
         "    s_cmp_ge_u32 s2, 256", "    s_cbranch_scc1 DONE"]
    def put(seq): o.extend("    " + c.text for c in seq)
    put(pro); put(pr); put(pad); o.append(".p2align 5"); o.append("LOOP:"); put(A); put(tailB); put(la)
    o += ["    " + t for t in dbg_end()]
    o += ["    s_waitcnt vmcnt(0)", "DONE:", "    s_endpgm", '.section .rodata,"a"', ".p2align 6", ".amdhsa_kernel %s_kernel" % NAME,
          "  .amdhsa_next_free_vgpr 512", "  .amdhsa_next_free_sgpr 102", "  .amdhsa_accum_offset 256",
          "  .amdhsa_group_segment_fixed_size 0", "  .amdhsa_kernarg_size 72", "  .amdhsa_user_sgpr_count 2",
          "  .amdhsa_user_sgpr_kernarg_segment_ptr 1", "  .amdhsa_system_sgpr_workgroup_id_x 1", ".end_amdhsa_kernel", ""]
    open(sys.argv[1], "w").write("\n".join(o))

main()
```

```python
import re

TRANS = ("v_exp_f32", "v_rcp_f32", "v_log_f32", "v_rsq_f32", "v_sqrt_f32")
NODST = ("ds_write", "buffer_store", "s_cmp", "s_waitcnt", "s_barrier", "s_nop", "s_branch",
         "s_cbranch", "s_endpgm", "s_setprio", "s_bitcmp")
SCC_WR = ("s_add_", "s_sub_", "s_and_", "s_or_", "s_xor_", "s_lshl_", "s_lshr_", "s_cmp", "s_bitcmp",
          "s_andn2", "s_addc", "s_bfe", "s_min", "s_max")
SCC_RD = ("s_cselect", "s_addc", "s_cbranch_scc")

COST = dict(valu=4, trans=8, salu=4, dsr=4, dsw=8, dsw128=8, dma=16, vst=8, vld=8, wait=4, barrier=8)
LDS_LAT = 120
GAP = dict(vm=96, dsw=40)


def regs_of(tok):
    tok = tok.strip()
    m = re.fullmatch(r"-?\|?([vas])(\d+)\|?", tok)
    if m:
        return [m.group(1) + m.group(2)]
    m = re.fullmatch(r"([vas])\[(\d+):(\d+)\]", tok)
    if m:
        return [m.group(1) + str(i) for i in range(int(m.group(2)), int(m.group(3)) + 1)]
    if tok in ("vcc", "m0", "exec", "scc"):
        return [tok]
    return []


class I:
    def __init__(self, text, rd=(), wr=(), dl=None, cost=None, early=None, tag=None):
        self.text = text
        self.dl = dl
        self.early = early
        self.tag = tag
        parts = text.split(None, 1)
        op = self.op = parts[0]
        ops = []
        if len(parts) > 1:
            ops = [o.strip() for o in parts[1].split(",")]
            last = ops[-1].split()
            self.mods = last[1:]
            ops[-1] = last[0]
        else:
            self.mods = []
        self.rd, self.wr = set(rd), set(wr)
        self.passes = 0
        self.ab, self.c = set(), set()
        self.states = 1
        self.label = text.endswith(":")
        if self.label:
            self.kind = "label"
            self.states = 0
            self.cost = 0
            return
        is_dma = op.startswith("buffer_load") and "lds" in self.mods
        nodst = op.startswith(NODST) or is_dma
        if nodst:
            for o in ops:
                self.rd.update(regs_of(o))
        else:
            self.wr.update(regs_of(ops[0]))
            for o in ops[1:]:
                self.rd.update(regs_of(o))
        if op.startswith("v_permlane"):
            self.rd.update(regs_of(ops[0]))
            self.wr.update(regs_of(ops[1]))
        if op.startswith(("v_fmac", "ds_read_u16_d16")):
            self.rd.update(regs_of(ops[0]))
        if op.startswith(SCC_WR):
            self.wr.add("scc")
        if op.startswith(SCC_RD):
            self.rd.add("scc")
        if op.startswith("s_and_saveexec"):
            self.wr.add("exec"); self.rd.add("exec")
        if op.startswith("v_mfma"):
            self.kind = "mfma"
            self.passes = 8 if "32x32" in op else 4
            self.ab = set(regs_of(ops[1])) | set(regs_of(ops[2]))
            self.c = set(regs_of(ops[3]))
        elif op.startswith(TRANS):
            self.kind = "trans"
        elif op.startswith("v_"):
            self.kind = "valu"
        elif op.startswith("ds_read"):
            self.kind = "dsr"
        elif op.startswith("ds_write"):
            self.kind = "dsw"
        elif is_dma:
            self.kind = "dma"
            self.rd.add("m0")
        elif op.startswith("buffer_store"):
            self.kind = "vst"
            self.data = set(regs_of(ops[0]))
        elif op.startswith("buffer_load"):
            self.kind = "vld"
        elif op == "s_waitcnt":
            self.kind = "wait"
        elif op == "s_barrier":
            self.kind = "barrier"
        elif op == "s_nop":
            self.kind = "salu"
            self.states = int(ops[0]) + 1
        elif op.startswith(("s_load", "s_memtime", "s_memrealtime")):
            self.kind = "smem"
        else:
            self.kind = "salu"
        if cost is not None:
            self.cost = cost
        elif self.kind == "mfma":
            self.cost = 8
        elif self.kind == "dsw" and "b128" in op:
            self.cost = COST["dsw128"]
        elif op == "s_nop":
            self.cost = 4 * self.states
        else:
            self.cost = COST.get(self.kind, 4)

    @property
    def isvalu(self):
        return self.kind in ("valu", "trans")


def is_sgpr(r):
    return r[0] == "s" and r != "scc" or r == "vcc"


def req_states(p, c):
    n = 0
    if p.kind == "mfma":
        big = p.passes == 8
        D = p.wr
        if c.kind == "mfma":
            if D & c.ab:
                n = max(n, 12 if big else 8)
            if D & c.c and not (c.c == D and c.passes == p.passes):
                n = max(n, 10 if big else 6)
            if D & c.wr and not (c.wr == D and c.passes == p.passes):
                n = max(n, 10 if big else 6)
        else:
            if D & (c.rd | c.wr):
                n = max(n, 12 if big else 8)
            if p.c & c.wr:
                n = max(n, 7 if big else 3)
    elif p.isvalu:
        ov = p.wr & c.rd
        if ov:
            vov = [r for r in ov if r[0] in "va" and r != "vcc"]
            sov = [r for r in ov if is_sgpr(r)]
            if vov:
                if c.kind == "mfma" or c.op.startswith("v_permlane") or "dpp" in c.text:
                    n = max(n, 2)
                if p.kind == "trans" and c.kind != "trans":
                    n = max(n, 1)
                if c.op.startswith(("v_readlane", "v_readfirstlane")):
                    n = max(n, 1)
            if sov:
                if c.isvalu:
                    n = max(n, 4 if c.op.startswith(("v_readlane", "v_writelane")) else 2)
                if c.kind in ("dma", "vst", "vld"):
                    n = max(n, 5)
        if "exec" in p.wr:
            n = max(n, 5)
    elif p.kind == "salu":
        if "m0" in p.wr and c.kind == "dma":
            n = max(n, 1)
    elif p.kind == "vst":
        if len(p.data) >= 3 and p.data & c.wr:
            n = max(n, 2)
    return n


class Stream:
    def __init__(self, history=()):
        self.out = []
        self.hist = list(history)
        self.q = []
        self.t = 0

    def short(self, c):
        need, dist = 0, 0
        for p in reversed(self.hist[-24:]):
            r = req_states(p, c)
            if r > dist:
                need = max(need, r - dist)
            dist += p.states
            if dist >= 13:
                break
        return need

    def wait_needed(self, c):
        k = -1
        touch = c.rd | c.wr
        for i, (p, _) in enumerate(self.q):
            if p.kind == "dsr" and (p.wr & touch):
                if c.kind == "dsr" and not (p.wr & c.rd):
                    continue
                k = i
        return k

    def raw(self, c):
        self.out.append(c)
        self.hist.append(c)
        if c.kind in ("dsr", "dsw"):
            self.q.append((c, self.t))
        if c.kind == "wait":
            m = re.search(r"lgkmcnt\((\d+)\)", c.text)
            if m:
                n = int(m.group(1))
                self.q = self.q[len(self.q) - n:] if n else []
        self.t += c.cost

    def emit(self, c, cover=LDS_LAT + 40):
        k = self.wait_needed(c)
        if k >= 0:
            while k + 1 < len(self.q) and self.t - self.q[k + 1][1] >= cover:
                k += 1
            n = min(len(self.q) - 1 - k, 15)
            self.raw(I("s_waitcnt lgkmcnt(%d)" % n))
        s = self.short(c)
        if s > 0:
            self.raw(I("s_nop %d" % (s - 1)))
        self.raw(c)


def linear(prog, history=()):
    s = Stream(history)
    for c in prog:
        s.emit(c)
    return s.out


def build_deps(prog):
    n = len(prog)
    preds = [dict() for _ in range(n)]
    lastw, readers = {}, {}
    for i, c in enumerate(prog):
        for r in c.rd:
            if r in lastw:
                p = prog[lastw[r]]
                if p.kind == "mfma":
                    lat = 0 if (c.kind == "mfma" and r in c.c and r not in c.ab) else p.passes * 4 + 24
                elif p.kind == "dsr":
                    lat = LDS_LAT
                elif p.isvalu and c.kind == "mfma":
                    lat = p.cost + 8
                elif p.kind == "trans":
                    lat = p.cost + 4
                else:
                    lat = p.cost
                preds[i][lastw[r]] = max(preds[i].get(lastw[r], 0), lat)
        for r in c.wr:
            if r in lastw:
                p = prog[lastw[r]]
                lat = p.passes * 4 + 24 if (p.kind == "mfma" and c.kind != "mfma") else 0
                preds[i][lastw[r]] = max(preds[i].get(lastw[r], 0), lat)
            for j in readers.get(r, ()):
                if j != i:
                    lat = LDS_LAT if (c.kind == "wait" and prog[j].kind in ("dsr", "dsw")) else 0
                    preds[i][j] = max(preds[i].get(j, 0), lat)
        for r in c.rd:
            readers.setdefault(r, []).append(i)
        for r in c.wr:
            lastw[r] = i
            readers[r] = []
    return preds


def schedule(prog, history=(), verbose=False, slack=0):
    n = len(prog)
    preds = build_deps(prog)
    succs = [[] for _ in range(n)]
    for i in range(n):
        for p, l in preds[i].items():
            succs[p].append((i, l))
    back = [i for i in range(n) if prog[i].kind == "mfma"]
    T, t = {}, 0
    for i in back:
        T[i] = t
        t += prog[i].passes * 4
    Tend = t
    dl = [0] * n
    for i in reversed(range(n)):
        if i in T:
            dl[i] = T[i]
            continue
        d = Tend + 200
        for s, l in succs[i]:
            d = min(d, dl[s] - max(l, prog[i].cost))
        if prog[i].dl is not None:
            d = min(d, prog[i].dl)
        dl[i] = d
    st = Stream(history)
    issued = [None] * n
    npred = [len(preds[i]) for i in range(n)]
    avail = set(i for i in range(n) if npred[i] == 0 and i not in T)
    bi, pipe, stall = 0, 0, 0
    left = n

    def soft(i):
        return max([issued[p] + l for p, l in preds[i].items()], default=0)

    lastof = dict(vm=-999, dsw=-999)

    def cls(c):
        return "vm" if c.kind in ("dma", "vst") else "dsw" if c.kind == "dsw" else None

    def do(i):
        nonlocal left
        issued[i] = st.t
        if cls(prog[i]):
            lastof[cls(prog[i])] = st.t
        st.emit(prog[i])
        left -= 1
        avail.discard(i)
        for s, _ in succs[i]:
            npred[s] -= 1
            if npred[s] == 0 and s not in T:
                avail.add(s)

    while left:
        m = back[bi] if bi < len(back) else None
        vt = T[m] if m is not None else Tend
        mready = m is not None and npred[m] == 0
        mextra = 0
        if mready:
            mextra = (4 if st.wait_needed(prog[m]) >= 0 else 0)
        mgo = mready and st.short(prog[m]) <= (1 if mextra else 0) and soft(m) <= max(st.t, pipe)
        cand = []
        for i in avail:
            c = prog[i]
            if c.early is not None and vt < c.early and mready:
                continue
            if cls(c) and mready and st.t < lastof[cls(c)] + GAP[cls(c)]:
                continue
            ok = soft(i) <= st.t and st.short(c) == 0
            cand.append((dl[i], i, ok))
        cand.sort()
        pick = None
        room = pipe - st.t - mextra + slack
        for d, i, ok in cand:
            if not ok:
                continue
            cst = prog[i].cost + (4 if st.wait_needed(prog[i]) >= 0 else 0)
            if (not mgo) or cst <= room or d < vt - 16:
                pick = i
                break
        if pick is not None:
            do(pick)
            continue
        if mready:
            t0 = max(st.t + mextra + 4 * max(0, st.short(prog[m]) - (1 if mextra else 0)), pipe, soft(m))
            k = st.wait_needed(prog[m])
            do(m)
            issued[m] = t0
            stall += max(0, t0 - pipe)
            prog[m].sched_t = t0
            st.t = t0 + 8
            pipe = t0 + prog[m].passes * 4
            bi += 1
            continue
        assert cand or avail, "deadlock"
        if not cand:
            cand = sorted((dl[i], i, False) for i in avail)
        i = min(cand, key=lambda x: (max(soft(x[1]), st.t + 4 * st.short(prog[x[1]])), x[0]))[1]
        st.t = max(st.t, soft(i))
        do(i)
    end = max(st.t, pipe)
    if verbose:
        cnt = {}
        for c in st.out:
            cnt[c.kind] = cnt.get(c.kind, 0) + 1
        nn = sum(1 for c in st.out if c.op == "s_nop")
        print("sched: mfma pipe %d, est %d, stall %d, n=%d nops=%d %s" % (Tend, end, stall, len(st.out), nn, cnt))
    return st.out, st


def verify(seq):
    s = Stream()
    bad = 0
    for c in seq:
        if s.short(c) > 0 or s.wait_needed(c) >= 0:
            print("HAZARD before:", c.text, s.short(c), s.wait_needed(c))
            bad += 1
        s.raw(c)
    return bad
```

```python
import sys, struct, math
sys.path.insert(0, "gen")
from asmlib import *

NAME = "standalone__window_attn_swin__vision"
OPT = dict(pe=250, x1at=3, pgap=56, gap=96, pst=0, dbg=0, sched=1, ones=0, slack=0, nt=0, pf=4)
for a in sys.argv[2:]:
    k, v = a.split("=")
    OPT[k] = int(v)

def f32(x):
    return "0x%08x" % struct.unpack("<I", struct.pack("<f", x))[0]

ROWB, XB = 147456, 56623104
LOG2E = math.log2(math.e)
MASKV = f32(-100.0 * LOG2E)
BE, BO = 4, 20
def S(T, Tp): return 40 + 32 * T + 16 * Tp
R, VP, RING, OX = 104, 176, 200, 224
vA, vB, vOR, vOW4, vOW2, vWP = 232, 236, 238, 239, 240, 241
vDMA, vDD, vTAB, vMK, vM, vTW4, vTW2 = 242, 243, 244, 245, 246, 247, 248
vST, vDS = 249, 252
vMK2, vM2 = vA, vA + 1
X0, XS, O0, OT, WOP = 0, 0x6000, 0xC000, 0x18000, 0x20000
def vRr(T, lohi): return 2 * T + lohi
sXA, sXB, sO, sW, sWo, sRp = 4, 8, 12, 16, 20, 24
sH, sC, sCnt, sM0, sSt, sD0, sD1, sDd, sDs, sFW, sFH = 28, 29, 30, 31, 32, 36, 37, 38, 39, 40, 41
sMB, sMA, sT0, sStg, sO2 = 42, 44, 46, 34, 48
def vr(b, n): return "v[%d:%d]" % (b, b + n - 1)
def ar(b, n): return "a[%d:%d]" % (b, b + n - 1)
def sr(b, n): return "s[%d:%d]" % (b, b + n - 1)
def WQK(mt, ks): return ar((ks * 3 + mt) * 4, 4)
def WV(t, ks): return ar(144 + (ks * 3 + t) * 4, 4)
WOP_REG = [S(0, 1), S(0, 1) + 4, S(0, 1) + 8, S(0, 1) + 12, S(1, 0), S(1, 0) + 4, S(1, 1), S(1, 1) + 4]
KSO = [0, 1, 4, 2, 3, 5]
def WO(t, ks):
    f = KSO.index(ks) * 3 + t
    return ar(216 + 4 * f, 4) if f < 10 else vr(WOP_REG[f - 10], 4)
def OACC(T, lohi, t):
    if t < 2: return S(T, lohi) + 8 + 4 * t
    return (OX if T == 0 else S(0, 0)) + 4 * lohi
M32, M16 = "v_mfma_f32_32x32x16_bf16", "v_mfma_f32_16x16x32_bf16"

class Ring:
    def __init__(self): self.i = 0
    def get(self):
        r = RING + 4 * (self.i % 6); self.i += 1
        return r
ring = Ring()

def xa_read(T, ks, buf, **kw):
    r = ring.get()
    j = (ks & 3) ^ (2 * T)
    return r, I("ds_read_b128 %s, v%d offset:%d" % (vr(r, 4), vA + j, buf * XS + T * 3072 + (ks >> 2) * 1024), rd=["X"], **kw)

def qk(T, buf, pre=()):
    p, acc = [], R + 24 * T
    for ks in range(12):
        if ks < len(pre): r = pre[ks]
        else:
            r, ins = xa_read(T, ks, buf); p.append(ins)
        for mt in range(3):
            d = vr(acc + 16 * mt, 16)
            p.append(I("%s %s, %s, %s, %s" % (M32, d, WQK(mt, ks), vr(r, 4), d if ks else "0")))
    return p

def cvt(d, a, b=None):
    return I("v_cvt_pk_bf16_f32 v%d, v%d, v%d" % (d, a, a + 1 if b is None else b))

def cvt_qk(T):
    b = R + 24 * T
    return [cvt(b + i, b + 2 * i) for i in range(24)]

def vgemm(buf):
    p = []
    for vt in range(4):
        acc = R + 48 + 12 * (vt & 1)
        for ks in range(6):
            r = ring.get()
            j = (ks & 1) ^ (vt & 1)
            p.append(I("ds_read_b128 %s, v%d offset:%d" % (vr(r, 4), vB + j, buf * XS + vt * 6144 + (ks >> 1) * 1024), rd=["X"]))
            for t in range(3):
                d = vr(acc + 4 * t, 4)
                p.append(I("%s %s, %s, %s, %s" % (M16, d, vr(r, 4), WV(t, ks), d if ks else "0")))
        for t in range(3):
            o = VP + ((vt >> 1) * 3 + t) * 4 + (vt & 1) * 2
            p += [cvt(o, acc + 4 * t), cvt(o + 1, acc + 4 * t + 2)]
    return p

def sgemm():
    p = []
    for T in range(2):
        for c in range(3):
            for Tp in range(2):
                d = vr(S(T, Tp), 16)
                bias = vr(BE, 16) if T == Tp else vr(BO if T > Tp else BO + 4, 16)
                p.append(I("%s %s, %s, %s, %s" % (M32, d, vr(R + 24 * Tp + 12 + 4 * c, 4), vr(R + 24 * T + 4 * c, 4), d if c else bias)))
    return p

def maxchain(dst, regs):
    p = [I("v_max3_f32 v%d, v%d, v%d, v%d" % (dst, regs[0], regs[1], regs[2]))]
    i = 3
    while i + 1 < len(regs):
        p.append(I("v_max3_f32 v%d, v%d, v%d, v%d" % (dst, dst, regs[i], regs[i + 1]))); i += 2
    if i < len(regs):
        p.append(I("v_max_f32 v%d, v%d, v%d" % (dst, dst, regs[i])))
    return p

def softmax(T, split):
    p = []
    vSum, vT, vAl, vAh = vRr(T, 0), vRr(T, 1), vM, vM2
    lo = [S(T, Tp) + r for Tp in range(2) for r in range(8)]
    hi = [x + 8 for x in lo]
    if split:
        p += maxchain(vM, lo) + maxchain(vM2, hi)
        p += [I("v_fma_f32 v%d, v%d, s%d, v%d" % (vM, vM, sC, vMK)), I("v_fma_f32 v%d, v%d, s%d, v%d" % (vM2, vM2, sC, vMK2)),
              I("v_max_f32 v%d, v%d, v%d" % (vM, vM, vM2))]
    else:
        p += maxchain(vM, [S(T, 0) + r for r in range(32)])
        p += [I("v_fma_f32 v%d, v%d, s%d, v%d" % (vM, vM, sC, vMK))]
    p += [I("v_mov_b32 v%d, v%d" % (vT, vM)), I("v_permlane32_swap_b32 v%d, v%d" % (vM, vT)),
          I("v_max_f32 v%d, v%d, v%d" % (vM, vM, vT)), ]
    if split: p.append(I("v_sub_f32 v%d, v%d, v%d" % (vAh, vMK2, vM)))
    p.append(I("v_sub_f32 v%d, v%d, v%d" % (vAl, vMK, vM)))
    first = True
    for k in range(8):
        for Tp in range(2):
            b = S(T, Tp)
            for r in (2 * k, 2 * k + 1):
                p.append(I("v_fma_f32 v%d, v%d, s%d, v%d" % (b + r, b + r, sC, vAh if (split and r >= 8) else vAl)))
                p.append(I("v_exp_f32 v%d, v%d" % (b + r, b + r)))
            if first:
                p.append(I("v_add_f32 v%d, v%d, v%d" % (vSum, b + 2 * k, b + 2 * k + 1))); first = False
            else:
                p += [I("v_add_f32 v%d, v%d, v%d" % (vSum, vSum, b + r)) for r in (2 * k, 2 * k + 1)]
            p.append(cvt(b + k, b + 2 * k))
        p.append(I("v_permlane16_swap_b32 v%d, v%d" % (S(T, 0) + k, S(T, 1) + k)))
    r0, r1 = vRr(T, 0), vRr(T, 1)
    p += [I("v_mov_b32 v%d, v%d" % (vT, vSum)), I("v_permlane32_swap_b32 v%d, v%d" % (vSum, vT)),
          I("v_add_f32 v%d, v%d, v%d" % (vSum, vSum, vT)), I("v_rcp_f32 v%d, v%d" % (r0, vSum)),
          I("v_mov_b32 v%d, v%d" % (r1, r0)), I("v_permlane16_swap_b32 v%d, v%d" % (r0, r1))]
    return p

def pv(T):
    p = []
    for s in range(2):
        for lohi in range(2):
            for t in range(3):
                d = vr(OACC(T, lohi, t), 4)
                p.append(I("%s %s, %s, %s, %s" % (M16, d, vr(VP + (s * 3 + t) * 4, 4), vr(S(T, lohi) + 4 * s, 4), d if s else "0")))
    return p

def owrite(T, ob):
    p = []
    for lohi in range(2):
        off = ob * XS + (2 * T + lohi) * 6144
        for t in range(3):
            a = OACC(T, lohi, t)
            p += [I("v_mul_f32 v%d, v%d, v%d" % (a + r, a + r, vRr(T, lohi))) for r in range(4)]
            d = a - 2 * t if t < 2 else a
            p += [cvt(d, a), cvt(d + 1, a + 2)]
        p.append(I("ds_write_b128 v%d, %s offset:%d" % (vOW4, vr(OACC(T, lohi, 0), 4), off), rd=["O"]))
        p.append(I("ds_write_b64 v%d, %s offset:%d" % (vOW2, vr(OACC(T, lohi, 2), 2), off), rd=["O"]))
    return p

def wop_read():
    return [I("ds_read_b128 %s, v%d offset:%d" % (vr(WOP_REG[f], 4), vWP, WOP - OT + f * 1024)) for f in range(8)]

def barrier():
    return [I("s_waitcnt vmcnt(0) lgkmcnt(0)", wr=["X", "O"]), I("s_barrier", rd=["X", "O"], wr=["X", "O"])]

NT = " nt" if OPT["nt"] else ""
def out_cvt(i):
    T, lohi, acc = i & 1, i >> 1, R + 48 + 12 * (i & 1)
    off = (4 * lohi + T) * 768
    p = [cvt(acc + j, acc + 2 * j) for j in range(4)] + [cvt(acc + 8, acc + 8), cvt(acc + 9, acc + 10)]
    p.append(I("ds_write_b128 v%d, %s offset:%d" % (vTW4, vr(acc, 4), off), wr=["T%d" % lohi]))
    p.append(I("ds_write_b64 v%d, %s offset:%d" % (vTW2, vr(acc + 8, 2), off), wr=["T%d" % lohi]))
    return p

def out_store(lohi, srd):
    p, regs = [], ([S(0, 0), S(0, 0) + 4, S(0, 0) + 8], [R + 48, R + 52, R + 56])[lohi]
    for q in range(3):
        p.append(I("ds_read_b128 %s, v%d offset:%d" % (vr(regs[q], 4), vWP, lohi * 3072 + q * 1024), rd=["T%d" % lohi]))
    for q in range(3):
        p.append(I("buffer_store_dwordx4 %s, v%d, %s, s%d offen%s" % (vr(regs[q], 4), vST + q, sr(srd, 4), sSt + lohi, NT)))
    return p

def proj(ob):
    p = []
    for i in range(4):
        T, lohi = i & 1, i >> 1
        acc = R + 48 + 12 * (i & 1)
        for n, ks in enumerate(KSO):
            r = ring.get()
            p.append(I("ds_read_b128 %s, v%d offset:%d" % (vr(r, 4), vOR, ob * XS + (2 * T + lohi) * 6144 + ks * 1024), rd=["O"]))
            for t in range(3):
                d = vr(acc + 4 * t, 4)
                p.append(I("%s %s, %s, %s, %s" % (M16, d, WO(t, ks), vr(r, 4), d if n else "0")))
        if i < 3: p += out_cvt(i)
        if i == 1: p += out_store(0, sO)
    return p

def carry(srd):
    return out_cvt(3) + out_store(1, srd)

def rl(s, lane): return I("v_readlane_b32 s%d, v%d, %d" % (s, vTAB, lane))

def xdma(e, buf, srd):
    p = [rl(sD0, e), rl(sD1, 16 + e), rl(sDd, 32 + e),
         I("v_mad_i32_i24 v%d, v%d, s%d, v%d" % (vDMA, vDD, sDd, vDMA))]
    for half in range(2):
        for cg in range(3):
            p.append(I("s_add_u32 m0, s%d, %d" % (sM0, buf * XS + half * 4 * 3072 + cg * 896)))
            p.append(I("buffer_load_dwordx4 v%d, %s, s%d offen offset:%d%s lds" % (vDMA, sr(srd, 4), sD0 + half, cg * 128, NT), rd=["X"]))
    return p

def win_mask(e, split=False):
    p = [rl(sFW, 48 + e), I("v_mov_b32 v%d, s%d" % (vMK, sFW)),
         I("v_cndmask_b32 v%d, 0, v%d, %s" % (vMK, vMK, sr(sMB, 2)))]
    if split:
        p += [I("v_or_b32 v%d, s%d, v%d" % (vM, sFH, vMK)),
              I("v_cndmask_b32 v%d, v%d, v%d, %s" % (vMK2, vM, vMK, sr(sMA, 2))),
              I("v_cndmask_b32 v%d, v%d, v%d, %s" % (vMK, vMK, vM, sr(sMA, 2)))]
    return p

def win_store(e):
    return [rl(sSt, e), rl(sSt + 1, 16 + e), rl(sDs, 32 + e)] + \
           [I("v_mad_i32_i24 v%d, v%d, s%d, v%d" % (vST + q, vDS + q, sDs, vST + q)) for q in range(3)]

def tag(p, name):
    for c in p:
        if c.kind in ("mfma", "wait"):
            c.tag = name
            break
    return p

PAIRS = [52, 54, 56, 58, 60, 78, 88, 90, 92, 94, 96, 98, 100]
def instamp(seq):
    if not OPT["dbg"] or OPT["pst"]: return seq
    out, i = [], 0
    for c in seq:
        if c.tag:
            out.append(I("s_memtime %s" % sr(PAIRS[i], 2))); i += 1
            sys.stderr.write("stamp %s est %s\n" % (c.tag, getattr(c, "sched_t", "")))
        out.append(c)
        if c.kind == "barrier":
            out.append(I("s_memtime %s" % sr(PAIRS[i], 2))); i += 1
    out.insert(len(out) - 1, I("s_memtime %s" % sr(PAIRS[i], 2)))
    return out

def setdl(p, dl):
    for c in p:
        c.dl = dl
    return p

def body(par):
    nb = 1 - par
    p = setdl(carry(sO if par else sO2), 500) + win_mask(par) + win_store(par) + setdl(xdma(par + 2, par, sXB if par else sXA), 1500)
    p += tag(sgemm(), "s")
    p += softmax(0, False) + tag(qk(0, nb), "qk0") + tag(pv(0), "pv0") + cvt_qk(0)
    p += softmax(1, False) + tag(qk(1, nb), "qk1") + owrite(0, par) + tag(pv(1), "pv1") + cvt_qk(1)
    p += owrite(1, par) + wop_read() + tag(vgemm(nb), "v") + tag(barrier(), "bar") + tag(proj(par), "proj")
    if par: p.append(I("v_mov_b32_dpp v%d, v%d row_shl:2 row_mask:0xf bank_mask:0xf" % (vTAB, vTAB)))
    return p

def last():
    p = setdl(carry(sO), 300) + win_mask(0, True) + win_store(0) + sgemm()
    p += softmax(0, True) + pv(0) + softmax(1, True) + owrite(0, 0) + pv(1) + owrite(1, 0) + wop_read()
    p += barrier() + proj(0) + carry(sO)
    return p

STG, RPB = 0xC000, 0x27000
vTo1, vTo2, vWd, vTq, vTq1, vTv, vBo = 1, 2, 3, vM, vMK, 255, 0
vm = []
def vcount(tag):
    k = max(i for i, x in enumerate(vm) if x == tag)
    n = len(vm) - 1 - k
    del vm[:k + 1]
    return n

def wdma(i):
    p = []
    for j in range(9):
        if j % 4 == 0:
            p.append(I("s_mov_b32 s%d, %d" % (sT0 + 1, 36864 * (i % 6) + 1024 * j)))
            p.append(I("s_add_u32 m0, s%d, %d" % (sStg, (i % 3) * 36864 + 1024 * j)))
        p.append(I("buffer_load_dwordx4 v%d, %s, s%d offen offset:%d lds" % (vWd, sr(sW if i < 6 else sWo, 4), sT0 + 1, (j % 4) * 1024), rd=["W"]))
        vm.append("w%d" % i)
    assert len(vm) <= 63
    return p

def prologue():
    p = []
    def e(t): p.append(I(t))
    pi = [5]
    def pst():
        if OPT["pst"]:
            e("s_memtime %s" % sr(PAIRS[pi[0]], 2)); pi[0] += 1
    def issue(t, tag): e(t); vm.append(tag); assert len(vm) <= 63
    if OPT["dbg"]: e("s_memrealtime s[74:75]")
    p.extend(stamp(0))
    e("s_load_dwordx4 s[52:55], s[0:1], 0"); e("s_load_dwordx4 s[56:59], s[0:1], 16"); e("s_load_dwordx2 s[60:61], s[0:1], 48")
    L, t0, t1, t2, t3, t4, t5 = 40, 41, 42, 43, 44, 45, 46
    e("v_and_b32 v%d, 63, v0" % L); e("v_lshrrev_b32 v%d, 6, v0" % t0); e("v_readfirstlane_b32 s%d, v%d" % (sH, t0))
    e("v_and_b32 v%d, 15, v%d" % (t0, L)); e("v_min_u32 v%d, 8, v%d" % (t0, t0))
    e("v_lshlrev_b32 v%d, 8, v%d" % (t1, t0)); e("v_add_u32 v%d, s2, v%d" % (t1, t1))
    e("v_mul_u32_u24 v%d, 43691, v%d" % (t2, t1)); e("v_lshrrev_b32 v%d, 21, v%d" % (t2, t2))
    e("v_mul_u32_u24 v%d, 48, v%d" % (t3, t2)); e("v_sub_u32 v%d, v%d, v%d" % (t1, t1, t3))
    e("v_mul_u32_u24 v%d, 3072, v%d" % (t3, t1)); e("v_add_u32 v%d, 1536, v%d" % (t3, t3))
    e("v_cmp_ne_u32 vcc, 47, v%d" % t1); e("v_cndmask_b32 v%d, 0, v%d, vcc" % (t3, t3))
    e("v_cndmask_b32 v%d, 1, 0, vcc" % t4)
    e("v_mul_u32_u24 v%d, %d, v%d" % (t5, 8 * ROWB, t2)); e("v_add_u32 v%d, v%d, v%d" % (t3, t3, t5))
    e("v_add_u32 v%d, %d, v%d" % (vTAB, 4 * ROWB, t3))
    e("v_add_u32 v%d, %d, v%d" % (t3, 8 * ROWB, t3)); e("v_subrev_u32 v%d, %d, v%d" % (t5, XB, t3))
    e("v_cmp_eq_u32 vcc, 47, v%d" % t2); e("v_cndmask_b32 v%d, v%d, v%d, vcc" % (t3, t3, t5))
    e("v_cmp_lt_u32 vcc, 15, v%d" % L); e("v_cndmask_b32 v%d, v%d, v%d, vcc" % (vTAB, vTAB, t3))
    e("v_cmp_eq_u32 vcc, 15, v%d" % t1); e("v_cndmask_b32 v%d, 0, 1, vcc" % t3)
    e("v_min_u32 v%d, v%d, v%d" % (t3, t3, t0)); e("v_sub_u32 v%d, v%d, v%d" % (t3, t4, t3))
    e("v_cmp_lt_u32 vcc, 31, v%d" % L); e("v_cndmask_b32 v%d, v%d, v%d, vcc" % (vTAB, vTAB, t3))
    e("v_sub_u32 v%d, 0, v%d" % (t4, t4)); e("v_and_b32 v%d, %s, v%d" % (t4, MASKV, t4))
    e("v_cmp_lt_u32 vcc, 47, v%d" % L); e("v_cndmask_b32 v%d, v%d, v%d, vcc" % (vTAB, vTAB, t4))
    e("s_lshr_b32 s%d, s%d, 1" % (sT0, sH)); e("s_xor_b32 s%d, s%d, s%d" % (sT0, sT0, sH)); e("s_and_b32 s%d, s%d, 1" % (sT0, sT0))
    e("s_lshl_b32 s%d, s%d, 2" % (sT0, sT0)); e("s_mul_i32 s%d, s%d, %d" % (sT0 + 1, sH, ROWB)); e("s_mul_i32 s%d, s%d, 3072" % (sM0, sH))
    e("v_lshrrev_b32 v%d, 4, v%d" % (t0, L)); e("v_or_b32 v%d, s%d, v%d" % (t0, sT0, t0))
    e("v_and_b32 v%d, 7, v%d" % (t1, L)); e("v_xor_b32 v%d, v%d, v%d" % (t0, t0, t1)); e("v_lshlrev_b32 v%d, 4, v%d" % (t0, t0))
    e("v_lshrrev_b32 v%d, 3, v%d" % (t1, L)); e("v_mul_u32_u24 v%d, 384, v%d" % (t1, t1))
    e("v_add3_u32 v%d, v%d, v%d, s%d" % (vDMA, t0, t1, sT0 + 1))
    e("v_mov_b32 v%d, %d" % (t0, 380 * 384)); e("v_mov_b32 v%d, -1536" % t1)
    e("v_cmp_gt_u32 vcc, 32, v%d" % L); e("v_cndmask_b32 v%d, v%d, v%d, vcc" % (vDD, t1, t0))
    e("s_mul_i32 s%d, s%d, 9216" % (sT0, sH)); e("v_lshl_add_u32 v%d, v%d, 4, s%d" % (vWd, L, sT0)); e("s_add_u32 s%d, s%d, %d" % (sStg, sT0, STG))
    e("s_lshl_b32 s%d, s%d, 9" % (sT0, sH)); e("v_lshl_add_u32 v%d, v%d, 2, s%d" % (t2, L, sT0))
    pst(); e("s_waitcnt lgkmcnt(0)"); pst()
    for d, b, n in ((sXA, 52, XB), (sW, 54, 192 * 1152), (sXB, 52, XB), (sWo, 56, 192 * 384), (sRp, 58, 1800), (sO, 60, XB), (sO2, 60, 0)):
        e("s_mov_b32 s%d, s%d" % (d, b)); e("s_mov_b32 s%d, s%d" % (d + 1, b + 1))
        e("s_mov_b32 s%d, %d" % (d + 2, n)); e("s_mov_b32 s%d, 0x00020000" % (d + 3))
        if d == sXA:
            for c in xdma(0, 0, sXA):
                p.append(c)
                if c.kind == "dma": vm.append("x0")
        if d == sW: p.extend(wdma(0))
        if d == sRp:
            e("s_add_u32 m0, s%d, %d" % (sT0, RPB))
            for q in range(2): issue("buffer_load_dword v%d, %s, 0 offen offset:%d lds" % (t2, sr(sRp, 4), 256 * q), "w1")
    p.extend(wdma(1)); p.extend(wdma(2))
    pst()
    e("s_mul_i32 s%d, s%d, 96" % (sT0, sH))
    for q in range(3):
        e("v_add_u32 v%d, %d, v%d" % (t2, 64 * q, L)); e("v_mul_u32_u24 v%d, 10923, v%d" % (t3, t2)); e("v_lshrrev_b32 v%d, 16, v%d" % (t3, t3))
        e("v_mul_u32_u24 v%d, 6, v%d" % (t4, t3)); e("v_sub_u32 v%d, v%d, v%d" % (t2, t2, t4))
        e("v_lshl_add_u32 v%d, v%d, 4, s%d" % (t2, t2, sT0))
        e("v_lshrrev_b32 v%d, 3, v%d" % (t4, t3)); e("v_mul_u32_u24 v%d, %d, v%d" % (t4, ROWB, t4))
        e("v_and_b32 v%d, 7, v%d" % (t3, t3)); e("v_mul_u32_u24 v%d, 384, v%d" % (t5, t3))
        e("v_add3_u32 v%d, v%d, v%d, v%d" % (vST + q, t2, t4, t5))
        e("v_cmp_gt_u32 vcc, 4, v%d" % t3); e("v_cndmask_b32 v%d, v%d, v%d, vcc" % (vDS + q, t1, t0))
    g, i16, rr, cc, hh, b4, xx, aa = 56, 57, 58, 59, 60, 61, 62, 63
    e("v_lshrrev_b32 v%d, 4, v%d" % (g, L)); e("v_bfe_u32 v%d, v%d, 2, 2" % (rr, L)); e("v_and_b32 v%d, 3, v%d" % (cc, L))
    e("v_lshrrev_b32 v%d, 5, v%d" % (hh, L)); e("v_bfe_u32 v%d, v%d, 4, 1" % (b4, L))
    e("v_and_b32 v%d, 7, v%d" % (xx, L)); e("v_bfe_u32 v%d, v%d, 3, 2" % (aa, L))
    e("v_mul_u32_u24 v%d, 30, v%d" % (t0, aa)); e("v_lshlrev_b32 v%d, 2, v%d" % (t1, hh)); e("v_sub_u32 v%d, v%d, v%d" % (t0, t0, t1))
    e("v_add3_u32 v%d, v%d, v%d, 4" % (t0, t0, xx)); e("s_lshl_b32 s%d, s%d, 1" % (sT0 + 1, sH))
    e("s_add_u32 s%d, s%d, %d" % (sT0 + 1, sT0 + 1, RPB))
    e("v_lshl_add_u32 v%d, v%d, 3, s%d" % (vBo, t0, sT0 + 1))
    for i in range(36): e("v_mov_b32 v%d, 0" % (BE + i))
    e("s_add_u32 s%d, s%d, %d" % (sT0 + 1, sT0, STG))
    e("v_lshl_add_u32 v%d, v%d, 3, v%d" % (t0, hh, rr)); e("v_mul_u32_u24 v%d, 1152, v%d" % (t0, t0))
    e("v_lshl_add_u32 v%d, v%d, 3, s%d" % (t1, cc, sT0 + 1))
    e("v_add_u32 v%d, v%d, v%d" % (t0, t0, t1)); e("v_lshl_add_u32 v%d, v%d, 5, v%d" % (vTq, b4, t0))
    e("v_mul_u32_u24 v%d, 320, v%d" % (t2, b4)); e("v_add_u32 v%d, v%d, v%d" % (vTq1, t0, t2))
    e("v_lshl_add_u32 v%d, v%d, 3, v%d" % (t0, g, rr)); e("v_mul_u32_u24 v%d, 1152, v%d" % (t0, t0)); e("v_add_u32 v%d, v%d, v%d" % (vTv, t0, t1))
    e("v_lshl_add_u32 v%d, v%d, 2, v%d" % (t0, g, rr)); e("v_mul_u32_u24 v%d, 384, v%d" % (t0, t0)); e("v_add_u32 v%d, v%d, v%d" % (vTo2, t0, t1))
    e("v_lshl_add_u32 v%d, v%d, 3, v%d" % (vTo1, cc, vTo2))
    e("v_lshrrev_b32 v%d, 1, v%d" % (t0, xx)); e("v_and_b32 v%d, 1, v%d" % (t1, aa)); e("v_lshl_or_b32 v%d, v%d, 2, v%d" % (t0, t1, t0))
    e("v_xor_b32 v%d, v%d, v%d" % (t0, t0, hh))
    e("v_mul_u32_u24 v%d, 6144, v%d" % (t1, aa)); e("v_lshl_add_u32 v%d, v%d, 7, v%d" % (t1, xx, t1))
    for j in range(4):
        e("v_xor_b32 v%d, %d, v%d" % (t2, 2 * j, t0)); e("v_lshl_add_u32 v%d, v%d, 4, v%d" % (vA + j, t2, t1))
    e("v_bfe_u32 v%d, v%d, 2, 1" % (t3, L)); e("v_bfe_u32 v%d, v%d, 3, 1" % (t4, L)); e("v_lshl_add_u32 v%d, v%d, 2, v%d" % (t5, t4, cc))
    e("v_lshrrev_b32 v%d, 1, v%d" % (t0, t5)); e("v_lshl_or_b32 v%d, v%d, 2, v%d" % (t0, t3, t0)); e("v_xor_b32 v%d, v%d, v%d" % (t0, t0, g))
    e("v_mul_u32_u24 v%d, 3072, v%d" % (t1, t3)); e("v_lshl_add_u32 v%d, v%d, 7, v%d" % (t1, t5, t1))
    for j in range(2):
        e("v_xor_b32 v%d, %d, v%d" % (t2, 4 * j, t0)); e("v_lshl_add_u32 v%d, v%d, 4, v%d" % (vB + j, t2, t1))
    e("v_lshlrev_b32 v%d, 4, v%d" % (t0, L)); e("v_add_u32 v%d, %d, v%d" % (vOR, O0, t0))
    e("s_lshl_b32 s%d, s%d, 10" % (sT0 + 1, sH)); e("v_add_u32 v%d, s%d, v%d" % (vOW4, sT0 + 1, vOR))
    e("s_lshl_b32 s%d, s%d, 13" % (sT0 + 1, sH)); e("s_add_u32 s%d, s%d, %d" % (sT0 + 1, sT0 + 1, OT)); e("v_add_u32 v%d, s%d, v%d" % (vWP, sT0 + 1, t0))
    e("v_lshl_add_u32 v%d, v%d, 4, v%d" % (t0, t4, xx)); e("v_mul_u32_u24 v%d, 96, v%d" % (t0, t0)); e("v_add_u32 v%d, s%d, v%d" % (t0, sT0 + 1, t0))
    e("v_lshl_add_u32 v%d, v%d, 4, v%d" % (vTW4, g, t0)); e("v_lshl_add_u32 v%d, v%d, 3, v%d" % (vTW2, g, t0)); e("v_add_u32 v%d, 64, v%d" % (vTW2, vTW2))
    e("s_lshr_b32 s%d, s%d, 1" % (sT0 + 1, sH)); e("s_lshl_b32 s%d, s%d, 10" % (sT0 + 1, sT0 + 1)); e("s_and_b32 s%d, s%d, 1" % (sC, sH))
    e("s_lshl_b32 s%d, s%d, 3" % (sC, sC)); e("s_add_u32 s%d, s%d, s%d" % (sT0 + 1, sT0 + 1, sC)); e("s_add_u32 s%d, s%d, 4096" % (sT0 + 1, sT0 + 1))
    e("v_add_u32 v%d, s%d, v%d" % (vOW2, sT0 + 1, vOR))
    e("s_mov_b32 s%d, %s" % (sC, f32(48 ** -0.5 * LOG2E)))
    e("s_mov_b32 s%d, 0xf0f0f0f0" % sMB); e("s_mov_b32 s%d, 0x0f0f0f0f" % (sMB + 1))
    e("s_mov_b32 s%d, 0xffff0000" % sMA); e("s_mov_b32 s%d, 0xffff0000" % (sMA + 1))
    e("s_cmp_ge_u32 s2, 208"); e("s_cselect_b32 s%d, %s, 0" % (sFH, MASKV)); e("s_mov_b32 s%d, 0" % sCnt)
    e("s_mov_b32 s%d, 0" % sSt); e("s_mov_b32 s%d, 0" % (sSt + 1))
    pst()
    return p

def pre():
    p = []
    def tr(dst, addr, off): p.append(I("ds_read_b64_tr_b16 %s, v%d offset:%d" % (dst, addr, off), rd=["W"]))
    def bump(regs, d): p.extend(I("v_add_u32 v%d, %d, v%d" % (r, d & 0xffffffff, r)) for r in regs)
    QA = [R, S(0, 0)]
    VA = [[R + 48, R + 52, R + 56], [R + 60, R + 64, R + 68], [88, 92, 96], [100, OX, OX + 4]]
    def mm(i):
        for ks in (2 * i, 2 * i + 1):
            for T in range(2):
                r, ins = xa_read(T, ks, 0); p.append(ins)
                for mt in range(3):
                    d = vr(QA[T] + 16 * mt, 16)
                    p.append(I("%s %s, %s, %s, %s" % (M32, d, WQK(mt, ks), vr(r, 4), d if ks else "0")))
        for vt in range(4):
            r = ring.get()
            p.append(I("ds_read_b128 %s, v%d offset:%d" % (vr(r, 4), vB + ((i & 1) ^ (vt & 1)), vt * 6144 + (i >> 1) * 1024), rd=["X"]))
            for t in range(3):
                d = vr(VA[vt][t], 4)
                p.append(I("%s %s, %s, %s, %s" % (M16, d, vr(r, 4), WV(t, i), d if i else "0")))
    for i in range(8):
        tok = ["W", "X"] if i == 0 else ["W"]
        ea = 576 * (i - 1) + OPT["pe"] if i else None
        p.append(I("s_waitcnt vmcnt(%d) lgkmcnt(0)" % vcount("w%d" % i), wr=tok, early=ea, tag="pw%d" % i))
        p.append(I("s_barrier", rd=tok, wr=tok))
        if 1 <= i <= 5: p += setdl(wdma(i + 2), ea)
        if i == OPT["x1at"]:
            for c in xdma(1, 1, sXA):
                c.rd.discard("X"); p.append(c)
                if c.kind == "dma": vm.append("w%d" % (i + 3)); c.rd.add("W")
        if i == 7:
            p += cvt_qk(0) + [cvt(R + 24 + j, S(0, 0) + 2 * j) for j in range(24)]
            for vt in range(4):
                for t in range(3):
                    o = VP + ((vt >> 1) * 3 + t) * 4 + (vt & 1) * 2
                    p += [cvt(o, VA[vt][t]), cvt(o + 1, VA[vt][t] + 2)]
        if i < 6:
            for k2 in range(2):
                for mt in range(3):
                    for u in range(2):
                        tr(ar(((2 * i + k2) * 3 + mt) * 4 + 2 * u, 2), vTq1 if mt == 1 else vTq, (16 * k2 + 4 * u) * 1152 + (0, 64, 384 + 32)[mt])
            for t in range(3):
                for u in range(2):
                    tr(ar(144 + (i * 3 + t) * 4 + 2 * u, 2), vTv, 4 * u * 1152 + 768 + 32 * t)
            if i < 5: bump((vTq, vTq1, vTv), -73728 if i == 2 else 36864)
        else:
            for f in range(9 * (i - 6), 9 * (i - 5)):
                ks, t = KSO[f // 3], f % 3
                for u in range(2):
                    row = (48 * ks + 16 * u if ks < 4 else 48 * (2 * (ks - 4) + u) + 32) % 96
                    dst = ar(216 + 4 * f + 2 * u, 2) if f < 10 else vr((RING if f < 16 else S(0, 0) - 24) + 4 * (f - 10) + 2 * u, 2)
                    tr(dst, vTo1 if t < 2 else vTo2, row * 384 + (8 * t if t < 2 else 64))
            if i == 6: bump((vTo1, vTo2), 36864)
        if i in (1, 2):
            for j in range(18 * (i - 1), 18 * i):
                G = -2 * (j >> 2) if j < 16 else 1 - 2 * ((j - 16) >> 2)
                p.append(I("ds_read_u16_d16_hi v%d, v%d offset:%d" % (BE + j, vBo, ((G + 7) * 15 + 3 - (j & 3)) * 8), rd=["W"]))
                p.append(I("v_mul_f32 v%d, %s, v%d" % (BE + j, f32(48 ** 0.5), BE + j)))
        if 1 <= i <= 6: mm(i - 1)
    for f in range(8):
        p.append(I("ds_write_b128 v%d, %s offset:%d" % (vWP, vr((RING if f < 6 else S(0, 0) - 24) + 4 * f, 4), WOP - OT + f * 1024), rd=["W"]))
    p += [I("s_waitcnt lgkmcnt(0)", wr=["W", "X"]), I("s_barrier", rd=["W", "X"], wr=["W", "X"])]
    assert not vm
    return p

def stamp(i):
    if not OPT["dbg"]: return []
    if i == "loop":
        return [I("s_memtime s[62:63]"), I("s_mov_b32 s68, s69"), I("s_mov_b32 s69, s70"), I("s_mov_b32 s70, s71"),
                I("s_waitcnt lgkmcnt(0)"), I("s_mov_b32 s71, s62")]
    return [I("s_memtime s[62:63]"), I("s_waitcnt lgkmcnt(0)"), I("s_mov_b32 s%d, s62" % (64 + i))]

def dbg_end():
    if not OPT["dbg"]: return []
    t = ["s_waitcnt vmcnt(0)"] + [c.text for c in stamp(9)]
    t += ["s_memrealtime s[76:77]", "s_load_dwordx2 s[80:81], s[0:1], 56", "s_load_dwordx2 s[84:85], s[0:1], 64", "s_waitcnt lgkmcnt(0)",
          "s_mov_b32 s86, 0x100000", "s_mov_b32 s87, 0x00020000",
          "s_mov_b32 s82, 256", "s_mov_b32 s83, 0x00020000", "s_mov_b32 s75, s76",
          "v_mbcnt_lo_u32_b32 v1, -1, 0", "v_lshlrev_b32 v1, 2, v1", "v_mov_b32 v0, 0"]
    for i in range(1, 10): t.append("s_sub_u32 s%d, s%d, s64" % (64 + i, 64 + i))
    for i in range(1, 12): t.append("v_writelane_b32 v0, s%d, %d" % (64 + i, i))
    for i, q in enumerate(PAIRS): t += ["s_sub_u32 s%d, s%d, s64" % (q, q), "v_writelane_b32 v0, s%d, %d" % (q, 16 + i)]
    t += ["s_mov_b64 exec, 0xffffffff", "s_lshl_b32 s62, s2, 2", "s_add_u32 s62, s62, s%d" % sH, "s_lshl_b32 s62, s62, 7",
          "buffer_store_dword v0, v1, s[84:87], s62 offen",
          "s_cmp_lg_u32 s62, %d" % (OPT["dbg"] * 512), "s_cbranch_scc1 FIN", "buffer_store_dword v0, v1, s[80:83], 0 offen", "FIN:"]
    return t

def sch(p, hist, name):
    if OPT["sched"]:
        sys.stderr.write(name + " ")
        so = sys.stdout; sys.stdout = sys.stderr
        out, st = schedule(p, hist, verbose=True, slack=OPT["slack"])
        sys.stdout = so
    else:
        out = linear(p, hist)
    return out + [I("s_waitcnt lgkmcnt(0)")]

def main():
    pro = linear(prologue())
    GAP["vm"] = OPT["pgap"]
    pr = sch(pre(), pro, "pre")
    if OPT["pst"]:
        o2, i = [], 0
        for c in pr:
            o2.append(c)
            if c.kind == "barrier": o2.append(I("s_memtime %s" % sr(PAIRS[i if i < 5 else i + 4], 2))); i += 1
        pr = o2
    pr += stamp(3)
    GAP["vm"] = OPT["gap"]
    tailB = []
    for it in range(2):
        ring.i = 0
        pa, pb = body(0), body(1)
        A = sch(pa, tailB if it else pr, "A")
        B = sch(pb, A, "B")
        ctl = [I("s_add_u32 s%d, s%d, 1" % (sCnt, sCnt)), I("s_cmp_eq_u32 s%d, 3" % sCnt),
               I("s_cselect_b32 s%d, 0, s%d" % (sXB + 2, sXB + 2)), I("s_mov_b32 s%d, s%d" % (sO2 + 2, sO + 2)), I("s_cmp_lt_u32 s%d, 4" % sCnt), I("s_cbranch_scc1 LOOP")]
        tailB = B + stamp("loop") + ctl
    A = instamp(A)
    la = sch(last(), tailB, "last") + stamp(8)
    pad = [I("s_nop 7"), I("s_nop 3")]
    bad = verify(pro + pr + pad + A + tailB + A + tailB + la)
    assert not bad
    ref = open("cdna_kernels/%s.s.ref" % NAME).read().split("\n")
    head = [l for l in ref if l.startswith(";") and "@launch" not in l]
    o = head + ["; @launch grid=(256,1,1) block=(256,1,1) lds=163840",
         '.amdgcn_target "amdgcn-amd-amdhsa--gfx950"', ".text", ".globl %s_kernel" % NAME, ".p2align 8",
         ".type %s_kernel,@function" % NAME, "%s_kernel:" % NAME,
         "    s_cmp_ge_u32 s2, 256", "    s_cbranch_scc1 DONE"]
    def put(seq): o.extend("    " + c.text for c in seq)
    put(pro); put(pr); put(pad); o.append(".p2align 5"); o.append("LOOP:"); put(A); put(tailB); put(la)
    o += ["    " + t for t in dbg_end()]
    o += ["    s_waitcnt vmcnt(0)", "DONE:", "    s_endpgm", '.section .rodata,"a"', ".p2align 6", ".amdhsa_kernel %s_kernel" % NAME,
          "  .amdhsa_next_free_vgpr 512", "  .amdhsa_next_free_sgpr 102", "  .amdhsa_accum_offset 256",
          "  .amdhsa_group_segment_fixed_size 0", "  .amdhsa_kernarg_size 72", "  .amdhsa_user_sgpr_count 2",
          "  .amdhsa_user_sgpr_kernarg_segment_ptr 1", "  .amdhsa_system_sgpr_workgroup_id_x 1", ".end_amdhsa_kernel", ""]
    open(sys.argv[1], "w").write("\n".join(o))

main()
```

```python
import sys, struct, math
sys.path.insert(0, "gen")
from asmlib import *

NAME = "standalone__window_attn_swin__vision"
OPT = dict(pe=250, x1at=3, pgap=56, gap=96, pst=0, dbg=0, sched=1, ones=0, slack=0, nt=0, st=0, exp=0, pf=4)
for a in sys.argv[2:]:
    k, v = a.split("=")
    OPT[k] = int(v)

def f32(x):
    return "0x%08x" % struct.unpack("<I", struct.pack("<f", x))[0]

ROWB, XB = 147456, 56623104
LOG2E = math.log2(math.e)
MASKV = f32(-100.0 * LOG2E)
BE, BO = 4, 20
def S(T, Tp): return 40 + 32 * T + 16 * Tp
R, VP, RING, OX = 104, 176, 200, 224
vA, vB, vOR, vOW4, vOW2, vWP = 232, 236, 238, 239, 240, 241
vDMA, vDD, vTAB, vMK, vM, vTW4, vTW2 = 242, 243, 244, 245, 246, 247, 248
vST, vDS = 249, 252
vMK2, vM2 = vA, vA + 1
X0, XS, O0, OT, WOP = 0, 0x6000, 0xC000, 0x18000, 0x20000
def vRr(T, lohi): return 2 * T + lohi
sXA, sXB, sO, sW, sWo, sRp = 4, 8, 12, 16, 20, 24
sH, sC, sCnt, sM0, sSt, sD0, sD1, sDd, sDs, sFW, sFH = 28, 29, 30, 31, 32, 36, 37, 38, 39, 40, 41
sMB, sMA, sT0, sStg, sO2 = 42, 44, 46, 34, 48
def vr(b, n): return "v[%d:%d]" % (b, b + n - 1)
def ar(b, n): return "a[%d:%d]" % (b, b + n - 1)
def sr(b, n): return "s[%d:%d]" % (b, b + n - 1)
def WQK(mt, ks): return ar((ks * 3 + mt) * 4, 4)
def WV(t, ks): return ar(144 + (ks * 3 + t) * 4, 4)
WOP_REG = [S(0, 1), S(0, 1) + 4, S(0, 1) + 8, S(0, 1) + 12, S(1, 0), S(1, 0) + 4, S(1, 1), S(1, 1) + 4]
KSO = [0, 1, 4, 2, 3, 5]
def WO(t, ks):
    f = KSO.index(ks) * 3 + t
    return ar(216 + 4 * f, 4) if f < 10 else vr(WOP_REG[f - 10], 4)
def OACC(T, lohi, t):
    if t < 2: return S(T, lohi) + 8 + 4 * t
    return (OX if T == 0 else S(0, 0)) + 4 * lohi
M32, M16 = "v_mfma_f32_32x32x16_bf16", "v_mfma_f32_16x16x32_bf16"

class Ring:
    def __init__(self): self.i = 0
    def get(self):
        r = RING + 4 * (self.i % 6); self.i += 1
        return r
ring = Ring()

def xa_read(T, ks, buf, **kw):
    r = ring.get()
    j = (ks & 3) ^ (2 * T)
    return r, I("ds_read_b128 %s, v%d offset:%d" % (vr(r, 4), vA + j, buf * XS + T * 3072 + (ks >> 2) * 1024), rd=["X"], **kw)

def qk(T, buf, pre=()):
    p, acc = [], R + 24 * T
    for ks in range(12):
        if ks < len(pre): r = pre[ks]
        else:
            r, ins = xa_read(T, ks, buf); p.append(ins)
        for mt in range(3):
            d = vr(acc + 16 * mt, 16)
            p.append(I("%s %s, %s, %s, %s" % (M32, d, WQK(mt, ks), vr(r, 4), d if ks else "0")))
    return p

def cvt(d, a, b=None):
    return I("v_cvt_pk_bf16_f32 v%d, v%d, v%d" % (d, a, a + 1 if b is None else b))

def cvt_qk(T):
    b = R + 24 * T
    return [cvt(b + i, b + 2 * i) for i in range(24)]

def vgemm(buf):
    p = []
    for vt in range(4):
        acc = R + 48 + 12 * (vt & 1)
        for ks in range(6):
            r = ring.get()
            j = (ks & 1) ^ (vt & 1)
            p.append(I("ds_read_b128 %s, v%d offset:%d" % (vr(r, 4), vB + j, buf * XS + vt * 6144 + (ks >> 1) * 1024), rd=["X"]))
            for t in range(3):
                d = vr(acc + 4 * t, 4)
                p.append(I("%s %s, %s, %s, %s" % (M16, d, vr(r, 4), WV(t, ks), d if ks else "0")))
        for t in range(3):
            o = VP + ((vt >> 1) * 3 + t) * 4 + (vt & 1) * 2
            p += [cvt(o, acc + 4 * t), cvt(o + 1, acc + 4 * t + 2)]
    return p

def sgemm():
    p = []
    for T in range(2):
        for c in range(3):
            for Tp in range(2):
                d = vr(S(T, Tp), 16)
                bias = vr(BE, 16) if T == Tp else vr(BO if T > Tp else BO + 4, 16)
                p.append(I("%s %s, %s, %s, %s" % (M32, d, vr(R + 24 * Tp + 12 + 4 * c, 4), vr(R + 24 * T + 4 * c, 4), d if c else bias)))
    return p

def maxchain(dst, regs):
    p = [I("v_max3_f32 v%d, v%d, v%d, v%d" % (dst, regs[0], regs[1], regs[2]))]
    i = 3
    while i + 1 < len(regs):
        p.append(I("v_max3_f32 v%d, v%d, v%d, v%d" % (dst, dst, regs[i], regs[i + 1]))); i += 2
    if i < len(regs):
        p.append(I("v_max_f32 v%d, v%d, v%d" % (dst, dst, regs[i])))
    return p

def softmax(T, split):
    p = []
    vSum, vT, vAl, vAh = vRr(T, 0), vRr(T, 1), vM, vM2
    lo = [S(T, Tp) + r for Tp in range(2) for r in range(8)]
    hi = [x + 8 for x in lo]
    if split:
        p += maxchain(vM, lo) + maxchain(vM2, hi)
        p += [I("v_fma_f32 v%d, v%d, s%d, v%d" % (vM, vM, sC, vMK)), I("v_fma_f32 v%d, v%d, s%d, v%d" % (vM2, vM2, sC, vMK2)),
              I("v_max_f32 v%d, v%d, v%d" % (vM, vM, vM2))]
    else:
        p += maxchain(vM, [S(T, 0) + r for r in range(32)])
        p += [I("v_fma_f32 v%d, v%d, s%d, v%d" % (vM, vM, sC, vMK))]
    p += [I("v_mov_b32 v%d, v%d" % (vT, vM)), I("v_permlane32_swap_b32 v%d, v%d" % (vM, vT)),
          I("v_max_f32 v%d, v%d, v%d" % (vM, vM, vT)), ]
    if split: p.append(I("v_sub_f32 v%d, v%d, v%d" % (vAh, vMK2, vM)))
    p.append(I("v_sub_f32 v%d, v%d, v%d" % (vAl, vMK, vM)))
    first = True
    for k in range(8):
        for Tp in range(2):
            b = S(T, Tp)
            for r in (2 * k, 2 * k + 1):
                p.append(I("v_fma_f32 v%d, v%d, s%d, v%d" % (b + r, b + r, sC, vAh if (split and r >= 8) else vAl)))
                p.append(I("v_exp_f32 v%d, v%d" % (b + r, b + r)))
            if first:
                p.append(I("v_add_f32 v%d, v%d, v%d" % (vSum, b + 2 * k, b + 2 * k + 1))); first = False
            else:
                p += [I("v_add_f32 v%d, v%d, v%d" % (vSum, vSum, b + r)) for r in (2 * k, 2 * k + 1)]
            p.append(cvt(b + k, b + 2 * k))
        p.append(I("v_permlane16_swap_b32 v%d, v%d" % (S(T, 0) + k, S(T, 1) + k)))
    r0, r1 = vRr(T, 0), vRr(T, 1)
    p += [I("v_mov_b32 v%d, v%d" % (vT, vSum)), I("v_permlane32_swap_b32 v%d, v%d" % (vSum, vT)),
          I("v_add_f32 v%d, v%d, v%d" % (vSum, vSum, vT)), I("v_rcp_f32 v%d, v%d" % (r0, vSum)),
          I("v_mov_b32 v%d, v%d" % (r1, r0)), I("v_permlane16_swap_b32 v%d, v%d" % (r0, r1))]
    return p

def pv(T):
    p = []
    for s in range(2):
        for lohi in range(2):
            for t in range(3):
                d = vr(OACC(T, lohi, t), 4)
                p.append(I("%s %s, %s, %s, %s" % (M16, d, vr(VP + (s * 3 + t) * 4, 4), vr(S(T, lohi) + 4 * s, 4), d if s else "0")))
    return p

def owrite(T, ob):
    p = []
    for lohi in range(2):
        off = ob * XS + (2 * T + lohi) * 6144
        for t in range(3):
            a = OACC(T, lohi, t)
            p += [I("v_mul_f32 v%d, v%d, v%d" % (a + r, a + r, vRr(T, lohi))) for r in range(4)]
            d = a - 2 * t if t < 2 else a
            p += [cvt(d, a), cvt(d + 1, a + 2)]
        p.append(I("ds_write_b128 v%d, %s offset:%d" % (vOW4, vr(OACC(T, lohi, 0), 4), off), rd=["O"]))
        p.append(I("ds_write_b64 v%d, %s offset:%d" % (vOW2, vr(OACC(T, lohi, 2), 2), off), rd=["O"]))
    return p

def wop_read():
    return [I("ds_read_b128 %s, v%d offset:%d" % (vr(WOP_REG[f], 4), vWP, WOP - OT + f * 1024)) for f in range(8)]

def barrier():
    return [I("s_waitcnt vmcnt(0) lgkmcnt(0)", wr=["X", "O"]), I("s_barrier", rd=["X", "O"], wr=["X", "O"])]

NT = " nt" if OPT["nt"] else ""
STF = ["", " nt", " sc1", " sc0 sc1", " sc0 sc1 nt"][OPT["st"]]
def out_cvt(i):
    T, lohi, acc = i & 1, i >> 1, R + 48 + 12 * (i & 1)
    off = (4 * lohi + T) * 768
    p = [cvt(acc + j, acc + 2 * j) for j in range(4)] + [cvt(acc + 8, acc + 8), cvt(acc + 9, acc + 10)]
    p.append(I("ds_write_b128 v%d, %s offset:%d" % (vTW4, vr(acc, 4), off), wr=["T%d" % lohi]))
    p.append(I("ds_write_b64 v%d, %s offset:%d" % (vTW2, vr(acc + 8, 2), off), wr=["T%d" % lohi]))
    return p

def out_store(lohi, srd):
    p, regs = [], ([S(0, 0), S(0, 0) + 4, S(0, 0) + 8], [R + 48, R + 52, R + 56])[lohi]
    for q in range(3):
        p.append(I("ds_read_b128 %s, v%d offset:%d" % (vr(regs[q], 4), vWP, lohi * 3072 + q * 1024), rd=["T%d" % lohi]))
    for q in range(3):
        p.append(I("buffer_store_dwordx4 %s, v%d, %s, s%d offen%s" % (vr(regs[q], 4), vST + q, sr(srd, 4), sSt + lohi, STF)))
    return p

def proj(ob):
    p = []
    for i in range(4):
        T, lohi = i & 1, i >> 1
        acc = R + 48 + 12 * (i & 1)
        for n, ks in enumerate(KSO):
            r = ring.get()
            p.append(I("ds_read_b128 %s, v%d offset:%d" % (vr(r, 4), vOR, ob * XS + (2 * T + lohi) * 6144 + ks * 1024), rd=["O"]))
            for t in range(3):
                d = vr(acc + 4 * t, 4)
                p.append(I("%s %s, %s, %s, %s" % (M16, d, WO(t, ks), vr(r, 4), d if n else "0")))
        if i < 3: p += out_cvt(i)
        if i == 1: p += out_store(0, sO)
    return p

def carry(srd):
    return out_cvt(3) + out_store(1, srd)

def rl(s, lane): return I("v_readlane_b32 s%d, v%d, %d" % (s, vTAB, lane))

def xdma(e, buf, srd):
    p = [rl(sD0, e), rl(sD1, 16 + e), rl(sDd, 32 + e),
         I("v_mad_i32_i24 v%d, v%d, s%d, v%d" % (vDMA, vDD, sDd, vDMA))]
    for half in range(2):
        for cg in range(3):
            p.append(I("s_add_u32 m0, s%d, %d" % (sM0, buf * XS + half * 4 * 3072 + cg * 896)))
            p.append(I("buffer_load_dwordx4 v%d, %s, s%d offen offset:%d%s lds" % (vDMA, sr(srd, 4), sD0 + half, cg * 128, NT), rd=["X"]))
    return p

def win_mask(e, split=False):
    p = [rl(sFW, 48 + e), I("v_mov_b32 v%d, s%d" % (vMK, sFW)),
         I("v_cndmask_b32 v%d, 0, v%d, %s" % (vMK, vMK, sr(sMB, 2)))]
    if split:
        p += [I("v_or_b32 v%d, s%d, v%d" % (vM, sFH, vMK)),
              I("v_cndmask_b32 v%d, v%d, v%d, %s" % (vMK2, vM, vMK, sr(sMA, 2))),
              I("v_cndmask_b32 v%d, v%d, v%d, %s" % (vMK, vMK, vM, sr(sMA, 2)))]
    return p

def win_store(e):
    return [rl(sSt, e), rl(sSt + 1, 16 + e), rl(sDs, 32 + e)] + \
           [I("v_mad_i32_i24 v%d, v%d, s%d, v%d" % (vST + q, vDS + q, sDs, vST + q)) for q in range(3)]

def tag(p, name):
    for c in p:
        if c.kind in ("mfma", "wait"):
            c.tag = name
            break
    return p

PAIRS = [52, 54, 56, 58, 60, 78, 88, 90, 92, 94, 96, 98, 100]
def instamp(seq):
    if not OPT["dbg"] or OPT["pst"]: return seq
    out, i = [], 0
    for c in seq:
        if c.tag:
            out.append(I("s_memtime %s" % sr(PAIRS[i], 2))); i += 1
            sys.stderr.write("stamp %s est %s\n" % (c.tag, getattr(c, "sched_t", "")))
        out.append(c)
        if c.kind == "barrier":
            out.append(I("s_memtime %s" % sr(PAIRS[i], 2))); i += 1
    out.insert(len(out) - 1, I("s_memtime %s" % sr(PAIRS[i], 2)))
    return out

def setdl(p, dl):
    for c in p:
        c.dl = dl
    return p

def body(par):
    nb = 1 - par
    p = setdl(carry(sO if par else sO2), 500) + win_mask(par) + win_store(par) + setdl(xdma(par + 2, par, sXB if par else sXA), 1500)
    p += tag(sgemm(), "s")
    p += softmax(0, False) + tag(qk(0, nb), "qk0") + tag(pv(0), "pv0") + cvt_qk(0)
    p += softmax(1, False) + tag(qk(1, nb), "qk1") + owrite(0, par) + tag(pv(1), "pv1") + cvt_qk(1)
    p += owrite(1, par) + wop_read() + tag(vgemm(nb), "v") + tag(barrier(), "bar") + tag(proj(par), "proj")
    if par: p.append(I("v_mov_b32_dpp v%d, v%d row_shl:2 row_mask:0xf bank_mask:0xf" % (vTAB, vTAB)))
    return p

def last():
    p = setdl(carry(sO), 300) + win_mask(0, True) + win_store(0) + sgemm()
    p += softmax(0, True) + pv(0) + softmax(1, True) + owrite(0, 0) + pv(1) + owrite(1, 0) + wop_read()
    p += barrier() + proj(0) + carry(sO)
    return p

STG, RPB = 0xC000, 0x27000
vTo1, vTo2, vWd, vTq, vTq1, vTv, vBo = 1, 2, 3, vM, vMK, 255, 0
vm = []
def vcount(tag):
    k = max(i for i, x in enumerate(vm) if x == tag)
    n = len(vm) - 1 - k
    del vm[:k + 1]
    return n

def wdma(i):
    p = []
    for j in range(9):
        if j % 4 == 0:
            p.append(I("s_mov_b32 s%d, %d" % (sT0 + 1, 36864 * (i % 6) + 1024 * j)))
            p.append(I("s_add_u32 m0, s%d, %d" % (sStg, (i % 3) * 36864 + 1024 * j)))
        if OPT["exp"] and i < 3:
            p.append(I("buffer_load_dwordx4 %s, v%d, %s, s%d offen offset:%d" % (ar(108 + 36 * i + 4 * j, 4), vWd, sr(sW, 4), sT0 + 1, (j % 4) * 1024), rd=["W"]))
        else:
            p.append(I("buffer_load_dwordx4 v%d, %s, s%d offen offset:%d lds" % (vWd, sr(sW if i < 6 else sWo, 4), sT0 + 1, (j % 4) * 1024), rd=["W"]))
        vm.append("w%d" % i)
    assert len(vm) <= 63
    return p

def prologue():
    p = []
    def e(t): p.append(I(t))
    pi = [5]
    def pst():
        if OPT["pst"]:
            e("s_memtime %s" % sr(PAIRS[pi[0]], 2)); pi[0] += 1
    def issue(t, tag): e(t); vm.append(tag); assert len(vm) <= 63
    if OPT["dbg"]: e("s_memrealtime s[74:75]")
    p.extend(stamp(0))
    e("s_load_dwordx4 s[52:55], s[0:1], 0"); e("s_load_dwordx4 s[56:59], s[0:1], 16"); e("s_load_dwordx2 s[60:61], s[0:1], 48")
    L, t0, t1, t2, t3, t4, t5 = 40, 41, 42, 43, 44, 45, 46
    e("v_and_b32 v%d, 63, v0" % L); e("v_lshrrev_b32 v%d, 6, v0" % t0); e("v_readfirstlane_b32 s%d, v%d" % (sH, t0))
    e("v_and_b32 v%d, 15, v%d" % (t0, L)); e("v_min_u32 v%d, 8, v%d" % (t0, t0))
    e("v_lshlrev_b32 v%d, 8, v%d" % (t1, t0)); e("v_add_u32 v%d, s2, v%d" % (t1, t1))
    e("v_mul_u32_u24 v%d, 43691, v%d" % (t2, t1)); e("v_lshrrev_b32 v%d, 21, v%d" % (t2, t2))
    e("v_mul_u32_u24 v%d, 48, v%d" % (t3, t2)); e("v_sub_u32 v%d, v%d, v%d" % (t1, t1, t3))
    e("v_mul_u32_u24 v%d, 3072, v%d" % (t3, t1)); e("v_add_u32 v%d, 1536, v%d" % (t3, t3))
    e("v_cmp_ne_u32 vcc, 47, v%d" % t1); e("v_cndmask_b32 v%d, 0, v%d, vcc" % (t3, t3))
    e("v_cndmask_b32 v%d, 1, 0, vcc" % t4)
    e("v_mul_u32_u24 v%d, %d, v%d" % (t5, 8 * ROWB, t2)); e("v_add_u32 v%d, v%d, v%d" % (t3, t3, t5))
    e("v_add_u32 v%d, %d, v%d" % (vTAB, 4 * ROWB, t3))
    e("v_add_u32 v%d, %d, v%d" % (t3, 8 * ROWB, t3)); e("v_subrev_u32 v%d, %d, v%d" % (t5, XB, t3))
    e("v_cmp_eq_u32 vcc, 47, v%d" % t2); e("v_cndmask_b32 v%d, v%d, v%d, vcc" % (t3, t3, t5))
    e("v_cmp_lt_u32 vcc, 15, v%d" % L); e("v_cndmask_b32 v%d, v%d, v%d, vcc" % (vTAB, vTAB, t3))
    e("v_cmp_eq_u32 vcc, 15, v%d" % t1); e("v_cndmask_b32 v%d, 0, 1, vcc" % t3)
    e("v_min_u32 v%d, v%d, v%d" % (t3, t3, t0)); e("v_sub_u32 v%d, v%d, v%d" % (t3, t4, t3))
    e("v_cmp_lt_u32 vcc, 31, v%d" % L); e("v_cndmask_b32 v%d, v%d, v%d, vcc" % (vTAB, vTAB, t3))
    e("v_sub_u32 v%d, 0, v%d" % (t4, t4)); e("v_and_b32 v%d, %s, v%d" % (t4, MASKV, t4))
    e("v_cmp_lt_u32 vcc, 47, v%d" % L); e("v_cndmask_b32 v%d, v%d, v%d, vcc" % (vTAB, vTAB, t4))
    e("s_lshr_b32 s%d, s%d, 1" % (sT0, sH)); e("s_xor_b32 s%d, s%d, s%d" % (sT0, sT0, sH)); e("s_and_b32 s%d, s%d, 1" % (sT0, sT0))
    e("s_lshl_b32 s%d, s%d, 2" % (sT0, sT0)); e("s_mul_i32 s%d, s%d, %d" % (sT0 + 1, sH, ROWB)); e("s_mul_i32 s%d, s%d, 3072" % (sM0, sH))
    e("v_lshrrev_b32 v%d, 4, v%d" % (t0, L)); e("v_or_b32 v%d, s%d, v%d" % (t0, sT0, t0))
    e("v_and_b32 v%d, 7, v%d" % (t1, L)); e("v_xor_b32 v%d, v%d, v%d" % (t0, t0, t1)); e("v_lshlrev_b32 v%d, 4, v%d" % (t0, t0))
    e("v_lshrrev_b32 v%d, 3, v%d" % (t1, L)); e("v_mul_u32_u24 v%d, 384, v%d" % (t1, t1))
    e("v_add3_u32 v%d, v%d, v%d, s%d" % (vDMA, t0, t1, sT0 + 1))
    e("v_mov_b32 v%d, %d" % (t0, 380 * 384)); e("v_mov_b32 v%d, -1536" % t1)
    e("v_cmp_gt_u32 vcc, 32, v%d" % L); e("v_cndmask_b32 v%d, v%d, v%d, vcc" % (vDD, t1, t0))
    e("s_mul_i32 s%d, s%d, 9216" % (sT0, sH)); e("v_lshl_add_u32 v%d, v%d, 4, s%d" % (vWd, L, sT0)); e("s_add_u32 s%d, s%d, %d" % (sStg, sT0, STG))
    e("s_lshl_b32 s%d, s%d, 9" % (sT0, sH)); e("v_lshl_add_u32 v%d, v%d, 2, s%d" % (t2, L, sT0))
    pst(); e("s_waitcnt lgkmcnt(0)"); pst()
    for d, b, n in ((sXA, 52, XB), (sW, 54, 192 * 1152), (sXB, 52, XB), (sWo, 56, 192 * 384), (sRp, 58, 1800), (sO, 60, XB), (sO2, 60, 0)):
        e("s_mov_b32 s%d, s%d" % (d, b)); e("s_mov_b32 s%d, s%d" % (d + 1, b + 1))
        e("s_mov_b32 s%d, %d" % (d + 2, n)); e("s_mov_b32 s%d, 0x00020000" % (d + 3))
        if d == sXA:
            for c in xdma(0, 0, sXA):
                p.append(c)
                if c.kind == "dma": vm.append("x0")
        if d == sW: p.extend(wdma(0))
        if d == sRp:
            e("s_add_u32 m0, s%d, %d" % (sT0, RPB))
            for q in range(2): issue("buffer_load_dword v%d, %s, 0 offen offset:%d lds" % (t2, sr(sRp, 4), 256 * q), "w1")
    p.extend(wdma(1)); p.extend(wdma(2))
    pst()
    e("s_mul_i32 s%d, s%d, 96" % (sT0, sH))
    for q in range(3):
        e("v_add_u32 v%d, %d, v%d" % (t2, 64 * q, L)); e("v_mul_u32_u24 v%d, 10923, v%d" % (t3, t2)); e("v_lshrrev_b32 v%d, 16, v%d" % (t3, t3))
        e("v_mul_u32_u24 v%d, 6, v%d" % (t4, t3)); e("v_sub_u32 v%d, v%d, v%d" % (t2, t2, t4))
        e("v_lshl_add_u32 v%d, v%d, 4, s%d" % (t2, t2, sT0))
        e("v_lshrrev_b32 v%d, 3, v%d" % (t4, t3)); e("v_mul_u32_u24 v%d, %d, v%d" % (t4, ROWB, t4))
        e("v_and_b32 v%d, 7, v%d" % (t3, t3)); e("v_mul_u32_u24 v%d, 384, v%d" % (t5, t3))
        e("v_add3_u32 v%d, v%d, v%d, v%d" % (vST + q, t2, t4, t5))
        e("v_cmp_gt_u32 vcc, 4, v%d" % t3); e("v_cndmask_b32 v%d, v%d, v%d, vcc" % (vDS + q, t1, t0))
    g, i16, rr, cc, hh, b4, xx, aa = 56, 57, 58, 59, 60, 61, 62, 63
    e("v_lshrrev_b32 v%d, 4, v%d" % (g, L)); e("v_bfe_u32 v%d, v%d, 2, 2" % (rr, L)); e("v_and_b32 v%d, 3, v%d" % (cc, L))
    e("v_lshrrev_b32 v%d, 5, v%d" % (hh, L)); e("v_bfe_u32 v%d, v%d, 4, 1" % (b4, L))
    e("v_and_b32 v%d, 7, v%d" % (xx, L)); e("v_bfe_u32 v%d, v%d, 3, 2" % (aa, L))
    e("v_mul_u32_u24 v%d, 30, v%d" % (t0, aa)); e("v_lshlrev_b32 v%d, 2, v%d" % (t1, hh)); e("v_sub_u32 v%d, v%d, v%d" % (t0, t0, t1))
    e("v_add3_u32 v%d, v%d, v%d, 4" % (t0, t0, xx)); e("s_lshl_b32 s%d, s%d, 1" % (sT0 + 1, sH))
    e("s_add_u32 s%d, s%d, %d" % (sT0 + 1, sT0 + 1, RPB))
    e("v_lshl_add_u32 v%d, v%d, 3, s%d" % (vBo, t0, sT0 + 1))
    for i in range(36): e("v_mov_b32 v%d, 0" % (BE + i))
    e("s_add_u32 s%d, s%d, %d" % (sT0 + 1, sT0, STG))
    e("v_lshl_add_u32 v%d, v%d, 3, v%d" % (t0, hh, rr)); e("v_mul_u32_u24 v%d, 1152, v%d" % (t0, t0))
    e("v_lshl_add_u32 v%d, v%d, 3, s%d" % (t1, cc, sT0 + 1))
    e("v_add_u32 v%d, v%d, v%d" % (t0, t0, t1)); e("v_lshl_add_u32 v%d, v%d, 5, v%d" % (vTq, b4, t0))
    e("v_mul_u32_u24 v%d, 320, v%d" % (t2, b4)); e("v_add_u32 v%d, v%d, v%d" % (vTq1, t0, t2))
    e("v_lshl_add_u32 v%d, v%d, 3, v%d" % (t0, g, rr)); e("v_mul_u32_u24 v%d, 1152, v%d" % (t0, t0)); e("v_add_u32 v%d, v%d, v%d" % (vTv, t0, t1))
    e("v_lshl_add_u32 v%d, v%d, 2, v%d" % (t0, g, rr)); e("v_mul_u32_u24 v%d, 384, v%d" % (t0, t0)); e("v_add_u32 v%d, v%d, v%d" % (vTo2, t0, t1))
    e("v_lshl_add_u32 v%d, v%d, 3, v%d" % (vTo1, cc, vTo2))
    e("v_lshrrev_b32 v%d, 1, v%d" % (t0, xx)); e("v_and_b32 v%d, 1, v%d" % (t1, aa)); e("v_lshl_or_b32 v%d, v%d, 2, v%d" % (t0, t1, t0))
    e("v_xor_b32 v%d, v%d, v%d" % (t0, t0, hh))
    e("v_mul_u32_u24 v%d, 6144, v%d" % (t1, aa)); e("v_lshl_add_u32 v%d, v%d, 7, v%d" % (t1, xx, t1))
    for j in range(4):
        e("v_xor_b32 v%d, %d, v%d" % (t2, 2 * j, t0)); e("v_lshl_add_u32 v%d, v%d, 4, v%d" % (vA + j, t2, t1))
    e("v_bfe_u32 v%d, v%d, 2, 1" % (t3, L)); e("v_bfe_u32 v%d, v%d, 3, 1" % (t4, L)); e("v_lshl_add_u32 v%d, v%d, 2, v%d" % (t5, t4, cc))
    e("v_lshrrev_b32 v%d, 1, v%d" % (t0, t5)); e("v_lshl_or_b32 v%d, v%d, 2, v%d" % (t0, t3, t0)); e("v_xor_b32 v%d, v%d, v%d" % (t0, t0, g))
    e("v_mul_u32_u24 v%d, 3072, v%d" % (t1, t3)); e("v_lshl_add_u32 v%d, v%d, 7, v%d" % (t1, t5, t1))
    for j in range(2):
        e("v_xor_b32 v%d, %d, v%d" % (t2, 4 * j, t0)); e("v_lshl_add_u32 v%d, v%d, 4, v%d" % (vB + j, t2, t1))
    e("v_lshlrev_b32 v%d, 4, v%d" % (t0, L)); e("v_add_u32 v%d, %d, v%d" % (vOR, O0, t0))
    e("s_lshl_b32 s%d, s%d, 10" % (sT0 + 1, sH)); e("v_add_u32 v%d, s%d, v%d" % (vOW4, sT0 + 1, vOR))
    e("s_lshl_b32 s%d, s%d, 13" % (sT0 + 1, sH)); e("s_add_u32 s%d, s%d, %d" % (sT0 + 1, sT0 + 1, OT)); e("v_add_u32 v%d, s%d, v%d" % (vWP, sT0 + 1, t0))
    e("v_lshl_add_u32 v%d, v%d, 4, v%d" % (t0, t4, xx)); e("v_mul_u32_u24 v%d, 96, v%d" % (t0, t0)); e("v_add_u32 v%d, s%d, v%d" % (t0, sT0 + 1, t0))
    e("v_lshl_add_u32 v%d, v%d, 4, v%d" % (vTW4, g, t0)); e("v_lshl_add_u32 v%d, v%d, 3, v%d" % (vTW2, g, t0)); e("v_add_u32 v%d, 64, v%d" % (vTW2, vTW2))
    e("s_lshr_b32 s%d, s%d, 1" % (sT0 + 1, sH)); e("s_lshl_b32 s%d, s%d, 10" % (sT0 + 1, sT0 + 1)); e("s_and_b32 s%d, s%d, 1" % (sC, sH))
    e("s_lshl_b32 s%d, s%d, 3" % (sC, sC)); e("s_add_u32 s%d, s%d, s%d" % (sT0 + 1, sT0 + 1, sC)); e("s_add_u32 s%d, s%d, 4096" % (sT0 + 1, sT0 + 1))
    e("v_add_u32 v%d, s%d, v%d" % (vOW2, sT0 + 1, vOR))
    e("s_mov_b32 s%d, %s" % (sC, f32(48 ** -0.5 * LOG2E)))
    e("s_mov_b32 s%d, 0xf0f0f0f0" % sMB); e("s_mov_b32 s%d, 0x0f0f0f0f" % (sMB + 1))
    e("s_mov_b32 s%d, 0xffff0000" % sMA); e("s_mov_b32 s%d, 0xffff0000" % (sMA + 1))
    e("s_cmp_ge_u32 s2, 208"); e("s_cselect_b32 s%d, %s, 0" % (sFH, MASKV)); e("s_mov_b32 s%d, 0" % sCnt)
    e("s_mov_b32 s%d, 0" % sSt); e("s_mov_b32 s%d, 0" % (sSt + 1))
    pst()
    return p

def pre():
    p = []
    def tr(dst, addr, off): p.append(I("ds_read_b64_tr_b16 %s, v%d offset:%d" % (dst, addr, off), rd=["W"]))
    def bump(regs, d): p.extend(I("v_add_u32 v%d, %d, v%d" % (r, d & 0xffffffff, r)) for r in regs)
    QA = [R, S(0, 0)]
    VA = [[R + 48, R + 52, R + 56], [R + 60, R + 64, R + 68], [88, 92, 96], [100, OX, OX + 4]]
    def mm(i):
        for ks in (2 * i, 2 * i + 1):
            for T in range(2):
                r, ins = xa_read(T, ks, 0); p.append(ins)
                for mt in range(3):
                    d = vr(QA[T] + 16 * mt, 16)
                    p.append(I("%s %s, %s, %s, %s" % (M32, d, WQK(mt, ks), vr(r, 4), d if ks else "0")))
        for vt in range(4):
            r = ring.get()
            p.append(I("ds_read_b128 %s, v%d offset:%d" % (vr(r, 4), vB + ((i & 1) ^ (vt & 1)), vt * 6144 + (i >> 1) * 1024), rd=["X"]))
            for t in range(3):
                d = vr(VA[vt][t], 4)
                p.append(I("%s %s, %s, %s, %s" % (M16, d, vr(r, 4), WV(t, i), d if i else "0")))
    for i in range(8):
        tok = ["W", "X"] if i == 0 else ["W"]
        ea = 576 * (i - 1) + OPT["pe"] if i else None
        p.append(I("s_waitcnt vmcnt(%d) lgkmcnt(0)" % vcount("w%d" % i), wr=tok, early=ea, tag="pw%d" % i))
        p.append(I("s_barrier", rd=tok, wr=tok))
        if 1 <= i <= 5: p += setdl(wdma(i + 2), ea)
        if i == OPT["x1at"]:
            for c in xdma(1, 1, sXA):
                c.rd.discard("X"); p.append(c)
                if c.kind == "dma": vm.append("w%d" % (i + 3)); c.rd.add("W")
        if i == 7:
            p += cvt_qk(0) + [cvt(R + 24 + j, S(0, 0) + 2 * j) for j in range(24)]
            for vt in range(4):
                for t in range(3):
                    o = VP + ((vt >> 1) * 3 + t) * 4 + (vt & 1) * 2
                    p += [cvt(o, VA[vt][t]), cvt(o + 1, VA[vt][t] + 2)]
        if i < 6:
            for k2 in range(2):
                for mt in range(3):
                    for u in range(2):
                        tr(ar(((2 * i + k2) * 3 + mt) * 4 + 2 * u, 2), vTq1 if mt == 1 else vTq, (16 * k2 + 4 * u) * 1152 + (0, 64, 384 + 32)[mt])
            for t in range(3):
                for u in range(2):
                    tr(ar(144 + (i * 3 + t) * 4 + 2 * u, 2), vTv, 4 * u * 1152 + 768 + 32 * t)
            if i < 5: bump((vTq, vTq1, vTv), -73728 if i == 2 else 36864)
        else:
            for f in range(9 * (i - 6), 9 * (i - 5)):
                ks, t = KSO[f // 3], f % 3
                for u in range(2):
                    row = (48 * ks + 16 * u if ks < 4 else 48 * (2 * (ks - 4) + u) + 32) % 96
                    dst = ar(216 + 4 * f + 2 * u, 2) if f < 10 else vr((RING if f < 16 else S(0, 0) - 24) + 4 * (f - 10) + 2 * u, 2)
                    tr(dst, vTo1 if t < 2 else vTo2, row * 384 + (8 * t if t < 2 else 64))
            if i == 6: bump((vTo1, vTo2), 36864)
        if i in (1, 2):
            for j in range(18 * (i - 1), 18 * i):
                G = -2 * (j >> 2) if j < 16 else 1 - 2 * ((j - 16) >> 2)
                p.append(I("ds_read_u16_d16_hi v%d, v%d offset:%d" % (BE + j, vBo, ((G + 7) * 15 + 3 - (j & 3)) * 8), rd=["W"]))
                p.append(I("v_mul_f32 v%d, %s, v%d" % (BE + j, f32(48 ** 0.5), BE + j)))
        if 1 <= i <= 6: mm(i - 1)
    for f in range(8):
        p.append(I("ds_write_b128 v%d, %s offset:%d" % (vWP, vr((RING if f < 6 else S(0, 0) - 24) + 4 * f, 4), WOP - OT + f * 1024), rd=["W"]))
    p += [I("s_waitcnt lgkmcnt(0)", wr=["W", "X"]), I("s_barrier", rd=["W", "X"], wr=["W", "X"])]
    assert not vm
    return p

def stamp(i):
    if not OPT["dbg"]: return []
    if i == "loop":
        return [I("s_memtime s[62:63]"), I("s_mov_b32 s68, s69"), I("s_mov_b32 s69, s70"), I("s_mov_b32 s70, s71"),
                I("s_waitcnt lgkmcnt(0)"), I("s_mov_b32 s71, s62")]
    return [I("s_memtime s[62:63]"), I("s_waitcnt lgkmcnt(0)"), I("s_mov_b32 s%d, s62" % (64 + i))]

def dbg_end():
    if not OPT["dbg"]: return []
    t = ["s_waitcnt vmcnt(0)"] + [c.text for c in stamp(9)]
    t += ["s_memrealtime s[76:77]", "s_load_dwordx2 s[80:81], s[0:1], 56", "s_load_dwordx2 s[84:85], s[0:1], 64", "s_waitcnt lgkmcnt(0)",
          "s_mov_b32 s86, 0x100000", "s_mov_b32 s87, 0x00020000",
          "s_mov_b32 s82, 256", "s_mov_b32 s83, 0x00020000", "s_mov_b32 s75, s76",
          "v_mbcnt_lo_u32_b32 v1, -1, 0", "v_lshlrev_b32 v1, 2, v1", "v_mov_b32 v0, 0"]
    for i in range(1, 10): t.append("s_sub_u32 s%d, s%d, s64" % (64 + i, 64 + i))
    for i in range(1, 12): t.append("v_writelane_b32 v0, s%d, %d" % (64 + i, i))
    for i, q in enumerate(PAIRS): t += ["s_sub_u32 s%d, s%d, s64" % (q, q), "v_writelane_b32 v0, s%d, %d" % (q, 16 + i)]
    t += ["s_mov_b64 exec, 0xffffffff", "s_lshl_b32 s62, s2, 2", "s_add_u32 s62, s62, s%d" % sH, "s_lshl_b32 s62, s62, 7",
          "buffer_store_dword v0, v1, s[84:87], s62 offen",
          "s_cmp_lg_u32 s62, %d" % (OPT["dbg"] * 512), "s_cbranch_scc1 FIN", "buffer_store_dword v0, v1, s[80:83], 0 offen", "FIN:"]
    return t

def sch(p, hist, name):
    if OPT["sched"]:
        sys.stderr.write(name + " ")
        so = sys.stdout; sys.stdout = sys.stderr
        out, st = schedule(p, hist, verbose=True, slack=OPT["slack"])
        sys.stdout = so
    else:
        out = linear(p, hist)
    return out + [I("s_waitcnt lgkmcnt(0)")]

def main():
    pro = linear(prologue())
    GAP["vm"] = OPT["pgap"]
    pr = sch(pre(), pro, "pre")
    if OPT["pst"]:
        o2, i = [], 0
        for c in pr:
            o2.append(c)
            if c.kind == "barrier": o2.append(I("s_memtime %s" % sr(PAIRS[i if i < 5 else i + 4], 2))); i += 1
        pr = o2
    pr += stamp(3)
    GAP["vm"] = OPT["gap"]
    tailB = []
    for it in range(2):
        ring.i = 0
        pa, pb = body(0), body(1)
        A = sch(pa, tailB if it else pr, "A")
        B = sch(pb, A, "B")
        ctl = [I("s_add_u32 s%d, s%d, 1" % (sCnt, sCnt)), I("s_cmp_eq_u32 s%d, 3" % sCnt),
               I("s_cselect_b32 s%d, 0, s%d" % (sXB + 2, sXB + 2)), I("s_mov_b32 s%d, s%d" % (sO2 + 2, sO + 2)), I("s_cmp_lt_u32 s%d, 4" % sCnt), I("s_cbranch_scc1 LOOP")]
        tailB = B + stamp("loop") + ctl
    A = instamp(A)
    la = sch(last(), tailB, "last") + stamp(8)
    pad = [I("s_nop 7"), I("s_nop 3")]
    bad = verify(pro + pr + pad + A + tailB + A + tailB + la)
    assert not bad
    ref = open("cdna_kernels/%s.s.ref" % NAME).read().split("\n")
    head = [l for l in ref if l.startswith(";") and "@launch" not in l]
    o = head + ["; @launch grid=(256,1,1) block=(256,1,1) lds=163840",
         '.amdgcn_target "amdgcn-amd-amdhsa--gfx950"', ".text", ".globl %s_kernel" % NAME, ".p2align 8",
         ".type %s_kernel,@function" % NAME, "%s_kernel:" % NAME,
         "    s_cmp_ge_u32 s2, 256", "    s_cbranch_scc1 DONE"]
    def put(seq): o.extend("    " + c.text for c in seq)
    put(pro); put(pr); put(pad); o.append(".p2align 5"); o.append("LOOP:"); put(A); put(tailB); put(la)
    o += ["    " + t for t in dbg_end()]
    o += ["    s_waitcnt vmcnt(0)", "DONE:", "    s_endpgm", '.section .rodata,"a"', ".p2align 6", ".amdhsa_kernel %s_kernel" % NAME,
          "  .amdhsa_next_free_vgpr 512", "  .amdhsa_next_free_sgpr 102", "  .amdhsa_accum_offset 256",
          "  .amdhsa_group_segment_fixed_size 0", "  .amdhsa_kernarg_size 72", "  .amdhsa_user_sgpr_count 2",
          "  .amdhsa_user_sgpr_kernarg_segment_ptr 1", "  .amdhsa_system_sgpr_workgroup_id_x 1", ".end_amdhsa_kernel", ""]
    open(sys.argv[1], "w").write("\n".join(o))

main()
```

```python
import sys, struct, math
sys.path.insert(0, "gen")
from asmlib import *

NAME = "standalone__window_attn_swin__vision"
OPT = dict(pe=250, wa=4, wb=9, w7t=3500, w7s=64, x2t=4200, x2s=128, b7=5900, pfl2=1, pk=0, pgap=56, gap=96, pst=0, dbg=0, sched=1, ones=0, slack=0, nt=0, st=0, exp=0, pf=4)
for a in sys.argv[2:]:
    k, v = a.split("=")
    OPT[k] = int(v)

def f32(x):
    return "0x%08x" % struct.unpack("<I", struct.pack("<f", x))[0]

ROWB, XB = 147456, 56623104
LOG2E = math.log2(math.e)
MASKV = f32(-100.0 * LOG2E)
BE, BO = 4, 20
def S(T, Tp): return 40 + 32 * T + 16 * Tp
R, VP, RING, OX = 104, 176, 200, 224
vA, vB, vOR, vOW4, vOW2, vWP = 232, 236, 238, 239, 240, 241
vDMA, vDD, vTAB, vMK, vM, vTW4, vTW2 = 242, 243, 244, 245, 246, 247, 248
vST, vDS = 249, 252
vMK2, vM2 = vA, vA + 1
X0, XS, O0, OT, WOP = 0, 0x6000, 0xC000, 0x18000, 0x20000
def vRr(T, lohi): return 2 * T + lohi
sXA, sXB, sO, sW, sWo, sRp = 4, 8, 12, 16, 20, 24
sH, sC, sCnt, sM0, sSt, sD0, sD1, sDd, sDs, sFW, sFH = 28, 29, 30, 31, 32, 36, 37, 38, 39, 40, 41
sMB, sMA, sT0, sStg, sO2 = 42, 44, 46, 34, 48
def vr(b, n): return "v[%d:%d]" % (b, b + n - 1)
def ar(b, n): return "a[%d:%d]" % (b, b + n - 1)
def sr(b, n): return "s[%d:%d]" % (b, b + n - 1)
def WQK(mt, ks): return ar((ks * 3 + mt) * 4, 4)
def WV(t, ks): return ar(144 + (ks * 3 + t) * 4, 4)
WOP_REG = [S(0, 1), S(0, 1) + 4, S(0, 1) + 8, S(0, 1) + 12, S(1, 0), S(1, 0) + 4, S(1, 1), S(1, 1) + 4]
KSO = [0, 1, 4, 2, 3, 5]
def WO(t, ks):
    f = KSO.index(ks) * 3 + t
    return ar(216 + 4 * f, 4) if f < 10 else vr(WOP_REG[f - 10], 4)
def OACC(T, lohi, t):
    if t < 2: return S(T, lohi) + 8 + 4 * t
    return (OX if T == 0 else S(0, 0)) + 4 * lohi
M32, M16 = "v_mfma_f32_32x32x16_bf16", "v_mfma_f32_16x16x32_bf16"

class Ring:
    def __init__(self): self.i = 0
    def get(self):
        r = RING + 4 * (self.i % 6); self.i += 1
        return r
ring = Ring()

def xa_read(T, ks, buf, **kw):
    r = ring.get()
    j = (ks & 3) ^ (2 * T)
    return r, I("ds_read_b128 %s, v%d offset:%d" % (vr(r, 4), vA + j, buf * XS + T * 3072 + (ks >> 2) * 1024), rd=["X"], **kw)

def qk(T, buf, pre=()):
    p, acc = [], R + 24 * T
    for ks in range(12):
        if ks < len(pre): r = pre[ks]
        else:
            r, ins = xa_read(T, ks, buf); p.append(ins)
        for mt in range(3):
            d = vr(acc + 16 * mt, 16)
            p.append(I("%s %s, %s, %s, %s" % (M32, d, WQK(mt, ks), vr(r, 4), d if ks else "0")))
    return p

def cvt(d, a, b=None):
    return I("v_cvt_pk_bf16_f32 v%d, v%d, v%d" % (d, a, a + 1 if b is None else b))

def cvt_qk(T):
    b = R + 24 * T
    return [cvt(b + i, b + 2 * i) for i in range(24)]

def vgemm(buf):
    p = []
    for vt in range(4):
        acc = R + 48 + 12 * (vt & 1)
        for ks in range(6):
            r = ring.get()
            j = (ks & 1) ^ (vt & 1)
            p.append(I("ds_read_b128 %s, v%d offset:%d" % (vr(r, 4), vB + j, buf * XS + vt * 6144 + (ks >> 1) * 1024), rd=["X"]))
            for t in range(3):
                d = vr(acc + 4 * t, 4)
                p.append(I("%s %s, %s, %s, %s" % (M16, d, vr(r, 4), WV(t, ks), d if ks else "0")))
        for t in range(3):
            o = VP + ((vt >> 1) * 3 + t) * 4 + (vt & 1) * 2
            p += [cvt(o, acc + 4 * t), cvt(o + 1, acc + 4 * t + 2)]
    return p

def sgemm():
    p = []
    for T in range(2):
        for c in range(3):
            for Tp in range(2):
                d = vr(S(T, Tp), 16)
                bias = vr(BE, 16) if T == Tp else vr(BO if T > Tp else BO + 4, 16)
                p.append(I("%s %s, %s, %s, %s" % (M32, d, vr(R + 24 * Tp + 12 + 4 * c, 4), vr(R + 24 * T + 4 * c, 4), d if c else bias)))
    return p

def maxchain(dst, regs):
    p = [I("v_max3_f32 v%d, v%d, v%d, v%d" % (dst, regs[0], regs[1], regs[2]))]
    i = 3
    while i + 1 < len(regs):
        p.append(I("v_max3_f32 v%d, v%d, v%d, v%d" % (dst, dst, regs[i], regs[i + 1]))); i += 2
    if i < len(regs):
        p.append(I("v_max_f32 v%d, v%d, v%d" % (dst, dst, regs[i])))
    return p

def softmax(T, split):
    p = []
    vSum, vT, vAl, vAh = vRr(T, 0), vRr(T, 1), vM, vM2
    lo = [S(T, Tp) + r for Tp in range(2) for r in range(8)]
    hi = [x + 8 for x in lo]
    if split:
        p += maxchain(vM, lo) + maxchain(vM2, hi)
        p += [I("v_fma_f32 v%d, v%d, s%d, v%d" % (vM, vM, sC, vMK)), I("v_fma_f32 v%d, v%d, s%d, v%d" % (vM2, vM2, sC, vMK2)),
              I("v_max_f32 v%d, v%d, v%d" % (vM, vM, vM2))]
    else:
        p += maxchain(vM, [S(T, 0) + r for r in range(32)])
        p += [I("v_fma_f32 v%d, v%d, s%d, v%d" % (vM, vM, sC, vMK))]
    p += [I("v_mov_b32 v%d, v%d" % (vT, vM)), I("v_permlane32_swap_b32 v%d, v%d" % (vM, vT)),
          I("v_max_f32 v%d, v%d, v%d" % (vM, vM, vT)), ]
    if split: p.append(I("v_sub_f32 v%d, v%d, v%d" % (vAh, vMK2, vM)))
    p.append(I("v_sub_f32 v%d, v%d, v%d" % (vAl, vMK, vM)))
    first = True
    for k in range(8):
        for Tp in range(2):
            b = S(T, Tp)
            for r in (2 * k, 2 * k + 1):
                p.append(I("v_fma_f32 v%d, v%d, s%d, v%d" % (b + r, b + r, sC, vAh if (split and r >= 8) else vAl)))
                p.append(I("v_exp_f32 v%d, v%d" % (b + r, b + r)))
            if first:
                p.append(I("v_add_f32 v%d, v%d, v%d" % (vSum, b + 2 * k, b + 2 * k + 1))); first = False
            else:
                p += [I("v_add_f32 v%d, v%d, v%d" % (vSum, vSum, b + r)) for r in (2 * k, 2 * k + 1)]
            p.append(cvt(b + k, b + 2 * k))
        p.append(I("v_permlane16_swap_b32 v%d, v%d" % (S(T, 0) + k, S(T, 1) + k)))
    r0, r1 = vRr(T, 0), vRr(T, 1)
    p += [I("v_mov_b32 v%d, v%d" % (vT, vSum)), I("v_permlane32_swap_b32 v%d, v%d" % (vSum, vT)),
          I("v_add_f32 v%d, v%d, v%d" % (vSum, vSum, vT)), I("v_rcp_f32 v%d, v%d" % (r0, vSum)),
          I("v_mov_b32 v%d, v%d" % (r1, r0)), I("v_permlane16_swap_b32 v%d, v%d" % (r0, r1))]
    return p

def pv(T):
    p = []
    for s in range(2):
        for lohi in range(2):
            for t in range(3):
                d = vr(OACC(T, lohi, t), 4)
                p.append(I("%s %s, %s, %s, %s" % (M16, d, vr(VP + (s * 3 + t) * 4, 4), vr(S(T, lohi) + 4 * s, 4), d if s else "0")))
    return p

def owrite(T, ob):
    p = []
    for lohi in range(2):
        off = ob * XS + (2 * T + lohi) * 6144
        for t in range(3):
            a = OACC(T, lohi, t)
            p += [I("v_mul_f32 v%d, v%d, v%d" % (a + r, a + r, vRr(T, lohi))) for r in range(4)]
            d = a - 2 * t if t < 2 else a
            p += [cvt(d, a), cvt(d + 1, a + 2)]
        p.append(I("ds_write_b128 v%d, %s offset:%d" % (vOW4, vr(OACC(T, lohi, 0), 4), off), rd=["O"]))
        p.append(I("ds_write_b64 v%d, %s offset:%d" % (vOW2, vr(OACC(T, lohi, 2), 2), off), rd=["O"]))
    return p

def wop_read():
    return [I("ds_read_b128 %s, v%d offset:%d" % (vr(WOP_REG[f], 4), vWP, WOP - OT + f * 1024)) for f in range(8)]

def barrier():
    return [I("s_waitcnt vmcnt(0) lgkmcnt(0)", wr=["X", "O"]), I("s_barrier", rd=["X", "O"], wr=["X", "O"])]

NT = " nt" if OPT["nt"] else ""
STF = ["", " nt", " sc1", " sc0 sc1", " sc0 sc1 nt"][OPT["st"]]
def out_cvt(i):
    T, lohi, acc = i & 1, i >> 1, R + 48 + 12 * (i & 1)
    off = (4 * lohi + T) * 768
    p = [cvt(acc + j, acc + 2 * j) for j in range(4)] + [cvt(acc + 8, acc + 8), cvt(acc + 9, acc + 10)]
    p.append(I("ds_write_b128 v%d, %s offset:%d" % (vTW4, vr(acc, 4), off), wr=["T%d" % lohi]))
    p.append(I("ds_write_b64 v%d, %s offset:%d" % (vTW2, vr(acc + 8, 2), off), wr=["T%d" % lohi]))
    return p

def out_store(lohi, srd):
    p, regs = [], ([S(0, 0), S(0, 0) + 4, S(0, 0) + 8], [R + 48, R + 52, R + 56])[lohi]
    for q in range(3):
        p.append(I("ds_read_b128 %s, v%d offset:%d" % (vr(regs[q], 4), vWP, lohi * 3072 + q * 1024), rd=["T%d" % lohi]))
    for q in range(3):
        p.append(I("buffer_store_dwordx4 %s, v%d, %s, s%d offen%s" % (vr(regs[q], 4), vST + q, sr(srd, 4), sSt + lohi, STF)))
    return p

def proj(ob):
    p = []
    for i in range(4):
        T, lohi = i & 1, i >> 1
        acc = R + 48 + 12 * (i & 1)
        for n, ks in enumerate(KSO):
            r = ring.get()
            p.append(I("ds_read_b128 %s, v%d offset:%d" % (vr(r, 4), vOR, ob * XS + (2 * T + lohi) * 6144 + ks * 1024), rd=["O"]))
            for t in range(3):
                d = vr(acc + 4 * t, 4)
                p.append(I("%s %s, %s, %s, %s" % (M16, d, WO(t, ks), vr(r, 4), d if n else "0")))
        if i < 3: p += out_cvt(i)
        if i == 1: p += out_store(0, sO)
    return p

def carry(srd):
    return out_cvt(3) + out_store(1, srd)

def rl(s, lane): return I("v_readlane_b32 s%d, v%d, %d" % (s, vTAB, lane))

def xdma(e, buf, srd):
    p = [rl(sD0, e), rl(sD1, 16 + e), rl(sDd, 32 + e),
         I("v_mad_i32_i24 v%d, v%d, s%d, v%d" % (vDMA, vDD, sDd, vDMA))]
    for half in range(2):
        for cg in range(3):
            p.append(I("s_add_u32 m0, s%d, %d" % (sM0, buf * XS + half * 4 * 3072 + cg * 896)))
            p.append(I("buffer_load_dwordx4 v%d, %s, s%d offen offset:%d%s lds" % (vDMA, sr(srd, 4), sD0 + half, cg * 128, NT), rd=["X"]))
    return p

def win_mask(e, split=False):
    p = [rl(sFW, 48 + e), I("v_mov_b32 v%d, s%d" % (vMK, sFW)),
         I("v_cndmask_b32 v%d, 0, v%d, %s" % (vMK, vMK, sr(sMB, 2)))]
    if split:
        p += [I("v_or_b32 v%d, s%d, v%d" % (vM, sFH, vMK)),
              I("v_cndmask_b32 v%d, v%d, v%d, %s" % (vMK2, vM, vMK, sr(sMA, 2))),
              I("v_cndmask_b32 v%d, v%d, v%d, %s" % (vMK, vMK, vM, sr(sMA, 2)))]
    return p

def win_store(e):
    return [rl(sSt, e), rl(sSt + 1, 16 + e), rl(sDs, 32 + e)] + \
           [I("v_mad_i32_i24 v%d, v%d, s%d, v%d" % (vST + q, vDS + q, sDs, vST + q)) for q in range(3)]

def tag(p, name):
    for c in p:
        if c.kind in ("mfma", "wait"):
            c.tag = name
            break
    return p

PAIRS = [52, 54, 56, 58, 60, 78, 88, 90, 92, 94, 96, 98, 100]
def instamp(seq):
    if not OPT["dbg"] or OPT["pst"]: return seq
    out, i = [], 0
    for c in seq:
        if c.tag:
            out.append(I("s_memtime %s" % sr(PAIRS[i], 2))); i += 1
            sys.stderr.write("stamp %s est %s\n" % (c.tag, getattr(c, "sched_t", "")))
        out.append(c)
        if c.kind == "barrier":
            out.append(I("s_memtime %s" % sr(PAIRS[i], 2))); i += 1
    out.insert(len(out) - 1, I("s_memtime %s" % sr(PAIRS[i], 2)))
    return out

def setdl(p, dl):
    for c in p:
        c.dl = dl
    return p

def body(par):
    nb = 1 - par
    p = setdl(carry(sO), 500) + win_mask(par) + win_store(par) + setdl(xdma(par + 2, par, sXB if par else sXA), 1500)
    p += tag(sgemm(), "s")
    p += softmax(0, False) + tag(qk(0, nb), "qk0") + tag(pv(0), "pv0") + cvt_qk(0)
    p += softmax(1, False) + tag(qk(1, nb), "qk1") + owrite(0, par) + tag(pv(1), "pv1") + cvt_qk(1)
    p += owrite(1, par) + wop_read() + tag(vgemm(nb), "v") + tag(barrier(), "bar") + tag(proj(par), "proj")
    if par: p.append(I("v_mov_b32_dpp v%d, v%d row_shl:2 row_mask:0xf bank_mask:0xf" % (vTAB, vTAB)))
    return p

def last():
    p = setdl(carry(sO), 300) + win_mask(0, True) + win_store(0) + sgemm()
    p += softmax(0, True) + pv(0) + softmax(1, True) + owrite(0, 0) + pv(1) + owrite(1, 0) + wop_read()
    p += barrier() + proj(0) + carry(sO)
    return p

STG, RPB = 0xC000, 0x27000
vTo1, vTo2, vWd, vTq, vTq1, vTv, vBo = 255, vMK, 255, vM, vMK, 3, 0
vm = []
def vcount(tag):
    k = max(i for i, x in enumerate(vm) if x == tag)
    n = len(vm) - 1 - k
    del vm[:k + 1]
    return n

sWs = 35
def slot(i): return (i + 1) % 3 if i < 6 else i - 5
def wdma(i, js=range(9), t0=None, dt=64):
    g = []
    for n, j in enumerate(js):
        p = []
        if j % 4 == 0 or n == 0:
            p.append(I("s_mov_b32 s%d, %d" % (sWs, 36864 * (i % 6) + 1024 * (j & ~3))))
            p.append(I("s_add_u32 m0, s%d, %d" % (sStg, slot(i) * 36864 + 1024 * (j & ~3))))
        t = None if t0 is None else t0 + n * dt
        p.append(I("buffer_load_dwordx4 v%d, %s, s%d offen offset:%d lds" % (vWd, sr(sW if i < 6 else sWo, 4), sWs, (j % 4) * 1024), rd=["W"], dl=t, early=t))
        vm.append("w%d" % i)
        g.append(p)
    assert len(vm) <= 63
    return g
def flat(g): return [c for p in g for c in p]
def xdma_t(e, buf, tagname, t0, dt, keepx):
    p, n = [], 0
    for c in xdma(e, buf, sXA):
        if c.kind == "dma":
            if not keepx: c.rd.discard("X")
            c.rd.add("W"); vm.append(tagname); c.dl = c.early = t0 + n * dt; n += 1
        p.append(c)
    return p

def prologue():
    p = []
    def e(t): p.append(I(t))
    pi = [5]
    def pst():
        if OPT["pst"]:
            e("s_memtime %s" % sr(PAIRS[pi[0]], 2)); pi[0] += 1
    def issue(t, tag): e(t); vm.append(tag); assert len(vm) <= 63
    if OPT["dbg"]: e("s_memrealtime s[74:75]")
    p.extend(stamp(0))
    e("s_load_dwordx4 s[52:55], s[0:1], 0"); e("s_load_dwordx4 s[56:59], s[0:1], 16"); e("s_load_dwordx2 s[60:61], s[0:1], 48")
    L, t0, t1, t2, t3, t4, t5 = 40, 41, 42, 43, 44, 45, 46
    e("v_and_b32 v%d, 63, v0" % L); e("v_lshrrev_b32 v%d, 6, v0" % t0); e("v_readfirstlane_b32 s%d, v%d" % (sH, t0))
    e("v_and_b32 v%d, 15, v%d" % (t0, L)); e("v_min_u32 v%d, 8, v%d" % (t0, t0))
    e("v_lshlrev_b32 v%d, 8, v%d" % (t1, t0)); e("v_add_u32 v%d, s2, v%d" % (t1, t1))
    e("v_mul_u32_u24 v%d, 43691, v%d" % (t2, t1)); e("v_lshrrev_b32 v%d, 21, v%d" % (t2, t2))
    e("v_mul_u32_u24 v%d, 48, v%d" % (t3, t2)); e("v_sub_u32 v%d, v%d, v%d" % (t1, t1, t3))
    e("v_mul_u32_u24 v%d, 3072, v%d" % (t3, t1)); e("v_add_u32 v%d, 1536, v%d" % (t3, t3))
    e("v_cmp_ne_u32 vcc, 47, v%d" % t1); e("v_cndmask_b32 v%d, 0, v%d, vcc" % (t3, t3))
    e("v_cndmask_b32 v%d, 1, 0, vcc" % t4)
    e("v_mul_u32_u24 v%d, %d, v%d" % (t5, 8 * ROWB, t2)); e("v_add_u32 v%d, v%d, v%d" % (t3, t3, t5))
    e("v_add_u32 v%d, %d, v%d" % (vTAB, 4 * ROWB, t3))
    e("v_add_u32 v%d, %d, v%d" % (t3, 8 * ROWB, t3)); e("v_subrev_u32 v%d, %d, v%d" % (t5, XB, t3))
    e("v_cmp_eq_u32 vcc, 47, v%d" % t2); e("v_cndmask_b32 v%d, v%d, v%d, vcc" % (t3, t3, t5))
    e("v_cmp_lt_u32 vcc, 15, v%d" % L); e("v_cndmask_b32 v%d, v%d, v%d, vcc" % (vTAB, vTAB, t3))
    e("v_cmp_eq_u32 vcc, 15, v%d" % t1); e("v_cndmask_b32 v%d, 0, 1, vcc" % t3)
    e("v_min_u32 v%d, v%d, v%d" % (t3, t3, t0)); e("v_sub_u32 v%d, v%d, v%d" % (t3, t4, t3))
    e("v_cmp_lt_u32 vcc, 31, v%d" % L); e("v_cndmask_b32 v%d, v%d, v%d, vcc" % (vTAB, vTAB, t3))
    e("v_sub_u32 v%d, 0, v%d" % (t4, t4)); e("v_and_b32 v%d, %s, v%d" % (t4, MASKV, t4))
    e("v_cmp_lt_u32 vcc, 47, v%d" % L); e("v_cndmask_b32 v%d, v%d, v%d, vcc" % (vTAB, vTAB, t4))
    e("s_lshr_b32 s%d, s%d, 1" % (sT0, sH)); e("s_xor_b32 s%d, s%d, s%d" % (sT0, sT0, sH)); e("s_and_b32 s%d, s%d, 1" % (sT0, sT0))
    e("s_lshl_b32 s%d, s%d, 2" % (sT0, sT0)); e("s_mul_i32 s%d, s%d, %d" % (sT0 + 1, sH, ROWB)); e("s_mul_i32 s%d, s%d, 3072" % (sM0, sH))
    e("v_lshrrev_b32 v%d, 4, v%d" % (t0, L)); e("v_or_b32 v%d, s%d, v%d" % (t0, sT0, t0))
    e("v_and_b32 v%d, 7, v%d" % (t1, L)); e("v_xor_b32 v%d, v%d, v%d" % (t0, t0, t1)); e("v_lshlrev_b32 v%d, 4, v%d" % (t0, t0))
    e("v_lshrrev_b32 v%d, 3, v%d" % (t1, L)); e("v_mul_u32_u24 v%d, 384, v%d" % (t1, t1))
    e("v_add3_u32 v%d, v%d, v%d, s%d" % (vDMA, t0, t1, sT0 + 1))
    e("v_mov_b32 v%d, %d" % (t0, 380 * 384)); e("v_mov_b32 v%d, -1536" % t1)
    e("v_cmp_gt_u32 vcc, 32, v%d" % L); e("v_cndmask_b32 v%d, v%d, v%d, vcc" % (vDD, t1, t0))
    e("s_mul_i32 s%d, s%d, 9216" % (sT0, sH)); e("v_lshl_add_u32 v%d, v%d, 4, s%d" % (vWd, L, sT0)); e("s_add_u32 s%d, s%d, %d" % (sStg, sT0, STG))
    e("v_lshlrev_b32 v47, 4, v%d" % L)
    e("s_lshr_b32 s%d, s2, 3" % sT0); e("s_lshl_b32 s%d, s%d, 2" % (sT0, sT0)); e("s_add_u32 s%d, s%d, s%d" % (sT0, sT0, sH))
    e("s_lshl_b32 s%d, s%d, 10" % (sT0, sT0)); e("v_add_u32 v48, s%d, v47" % sT0); e("s_mov_b32 m0, %d" % RPB); e("s_mov_b32 s%d, 131072" % sWs)
    e("s_cmp_ge_u32 s2, 208"); e("s_cselect_b32 s%d, %s, 0" % (sFH, MASKV)); e("s_mov_b32 s%d, 0" % sCnt)
    pst(); e("s_waitcnt lgkmcnt(0)"); pst()
    for d, b, n in ((sRp, 58, 1800), (sW, 54, 192 * 1152), (sWo, 56, 192 * 384), (sXA, 52, XB), (sXB, 52, XB), (sO, 60, XB)):
        e("s_mov_b32 s%d, s%d" % (d, b)); e("s_mov_b32 s%d, s%d" % (d + 1, b + 1))
        e("s_mov_b32 s%d, %d" % (d + 2, n)); e("s_mov_b32 s%d, 0x00020000" % (d + 3))
        if d == sRp:
            for q in range(2): issue("buffer_load_dwordx4 v47, %s, 0 offen offset:%d lds" % (sr(sRp, 4), 1024 * q), "rp")
        if d == sW and OPT["pfl2"]:
            issue("buffer_load_dwordx4 %s, v48, %s, 0 offen" % (vr(VP, 4), sr(sW, 4)), "pf")
            issue("buffer_load_dwordx4 %s, v48, %s, s%d offen" % (vr(VP + 4, 4), sr(sW, 4), sWs), "pf")
        if d == sWo and OPT["pfl2"]: issue("buffer_load_dwordx4 %s, v48, %s, 0 offen" % (vr(VP + 8, 4), sr(sWo, 4)), "pf")
        if d == sXA:
            for c in xdma(0, 0, sXA):
                p.append(c)
                if c.kind == "dma": vm.append("x0")
    head, p = p, []
    def e(t): p.append(I(t))
    e("s_mul_i32 s%d, s%d, 96" % (sT0, sH))
    for q in range(3):
        e("v_add_u32 v%d, %d, v%d" % (t2, 64 * q, L)); e("v_mul_u32_u24 v%d, 10923, v%d" % (t3, t2)); e("v_lshrrev_b32 v%d, 16, v%d" % (t3, t3))
        e("v_mul_u32_u24 v%d, 6, v%d" % (t4, t3)); e("v_sub_u32 v%d, v%d, v%d" % (t2, t2, t4))
        e("v_lshl_add_u32 v%d, v%d, 4, s%d" % (t2, t2, sT0))
        e("v_lshrrev_b32 v%d, 3, v%d" % (t4, t3)); e("v_mul_u32_u24 v%d, %d, v%d" % (t4, ROWB, t4))
        e("v_and_b32 v%d, 7, v%d" % (t3, t3)); e("v_mul_u32_u24 v%d, 384, v%d" % (t5, t3))
        e("v_add3_u32 v%d, v%d, v%d, v%d" % (vST + q, t2, t4, t5))
        e("v_cmp_gt_u32 vcc, 4, v%d" % t3); e("v_cndmask_b32 v%d, v%d, v%d, vcc" % (vDS + q, t1, t0))
    g, i16, rr, cc, hh, b4, xx, aa = 56, 57, 58, 59, 60, 61, 62, 63
    e("v_lshrrev_b32 v%d, 4, v%d" % (g, L)); e("v_bfe_u32 v%d, v%d, 2, 2" % (rr, L)); e("v_and_b32 v%d, 3, v%d" % (cc, L))
    e("v_lshrrev_b32 v%d, 5, v%d" % (hh, L)); e("v_bfe_u32 v%d, v%d, 4, 1" % (b4, L))
    e("v_and_b32 v%d, 7, v%d" % (xx, L)); e("v_bfe_u32 v%d, v%d, 3, 2" % (aa, L))
    e("v_mul_u32_u24 v%d, 30, v%d" % (t0, aa)); e("v_lshlrev_b32 v%d, 2, v%d" % (t1, hh)); e("v_sub_u32 v%d, v%d, v%d" % (t0, t0, t1))
    e("v_add3_u32 v%d, v%d, v%d, 4" % (t0, t0, xx)); e("s_lshl_b32 s%d, s%d, 1" % (sT0 + 1, sH))
    e("s_add_u32 s%d, s%d, %d" % (sT0 + 1, sT0 + 1, RPB))
    e("v_lshl_add_u32 v%d, v%d, 3, s%d" % (vBo, t0, sT0 + 1))
    for i in range(36): e("v_mov_b32 v%d, 0" % (BE + i))
    e("s_add_u32 s%d, s%d, %d" % (sT0 + 1, sT0, STG + 36864))
    e("v_lshl_add_u32 v%d, v%d, 3, v%d" % (t0, hh, rr)); e("v_mul_u32_u24 v%d, 1152, v%d" % (t0, t0))
    e("v_lshl_add_u32 v%d, v%d, 3, s%d" % (t1, cc, sT0 + 1))
    e("v_add_u32 v%d, v%d, v%d" % (t0, t0, t1)); e("v_lshl_add_u32 v%d, v%d, 5, v%d" % (vTq, b4, t0))
    e("v_mul_u32_u24 v%d, 320, v%d" % (t2, b4)); e("v_add_u32 v%d, v%d, v%d" % (vTq1, t0, t2))
    e("v_lshl_add_u32 v%d, v%d, 3, v%d" % (t0, g, rr)); e("v_mul_u32_u24 v%d, 1152, v%d" % (t0, t0)); e("v_add_u32 v%d, v%d, v%d" % (vTv, t0, t1))
    e("v_lshl_add_u32 v%d, v%d, 2, v%d" % (t0, g, rr)); e("v_mul_u32_u24 v%d, 384, v%d" % (t0, t0)); e("v_add_u32 v%d, v%d, v%d" % (t0, t0, t1))
    e("v_accvgpr_write_b32 a253, v%d" % t0); e("v_lshl_add_u32 v%d, v%d, 3, v%d" % (t0, cc, t0)); e("v_accvgpr_write_b32 a252, v%d" % t0)
    e("v_lshrrev_b32 v%d, 1, v%d" % (t0, xx)); e("v_and_b32 v%d, 1, v%d" % (t1, aa)); e("v_lshl_or_b32 v%d, v%d, 2, v%d" % (t0, t1, t0))
    e("v_xor_b32 v%d, v%d, v%d" % (t0, t0, hh))
    e("v_mul_u32_u24 v%d, 6144, v%d" % (t1, aa)); e("v_lshl_add_u32 v%d, v%d, 7, v%d" % (t1, xx, t1))
    for j in range(4):
        e("v_xor_b32 v%d, %d, v%d" % (t2, 2 * j, t0)); e("v_lshl_add_u32 v%d, v%d, 4, v%d" % (vA + j, t2, t1))
    e("v_bfe_u32 v%d, v%d, 2, 1" % (t3, L)); e("v_bfe_u32 v%d, v%d, 3, 1" % (t4, L)); e("v_lshl_add_u32 v%d, v%d, 2, v%d" % (t5, t4, cc))
    e("v_lshrrev_b32 v%d, 1, v%d" % (t0, t5)); e("v_lshl_or_b32 v%d, v%d, 2, v%d" % (t0, t3, t0)); e("v_xor_b32 v%d, v%d, v%d" % (t0, t0, g))
    e("v_mul_u32_u24 v%d, 3072, v%d" % (t1, t3)); e("v_lshl_add_u32 v%d, v%d, 7, v%d" % (t1, t5, t1))
    for j in range(2):
        e("v_xor_b32 v%d, %d, v%d" % (t2, 4 * j, t0)); e("v_lshl_add_u32 v%d, v%d, 4, v%d" % (vB + j, t2, t1))
    e("v_lshlrev_b32 v%d, 4, v%d" % (t0, L)); e("v_add_u32 v%d, %d, v%d" % (vOR, O0, t0))
    e("s_lshl_b32 s%d, s%d, 10" % (sT0 + 1, sH)); e("v_add_u32 v%d, s%d, v%d" % (vOW4, sT0 + 1, vOR))
    e("s_lshl_b32 s%d, s%d, 13" % (sT0 + 1, sH)); e("s_add_u32 s%d, s%d, %d" % (sT0 + 1, sT0 + 1, OT)); e("v_add_u32 v%d, s%d, v%d" % (vWP, sT0 + 1, t0))
    e("v_lshl_add_u32 v%d, v%d, 4, v%d" % (t0, t4, xx)); e("v_mul_u32_u24 v%d, 96, v%d" % (t0, t0)); e("v_add_u32 v%d, s%d, v%d" % (t0, sT0 + 1, t0))
    e("v_lshl_add_u32 v%d, v%d, 4, v%d" % (vTW4, g, t0)); e("v_lshl_add_u32 v%d, v%d, 3, v%d" % (vTW2, g, t0)); e("v_add_u32 v%d, 64, v%d" % (vTW2, vTW2))
    e("s_lshr_b32 s%d, s%d, 1" % (sT0 + 1, sH)); e("s_lshl_b32 s%d, s%d, 10" % (sT0 + 1, sT0 + 1)); e("s_and_b32 s%d, s%d, 1" % (sC, sH))
    e("s_lshl_b32 s%d, s%d, 3" % (sC, sC)); e("s_add_u32 s%d, s%d, s%d" % (sT0 + 1, sT0 + 1, sC)); e("s_add_u32 s%d, s%d, 4096" % (sT0 + 1, sT0 + 1))
    e("v_add_u32 v%d, s%d, v%d" % (vOW2, sT0 + 1, vOR))
    e("s_mov_b32 s%d, %s" % (sC, f32(48 ** -0.5 * LOG2E)))
    e("s_mov_b32 s%d, 0xf0f0f0f0" % sMB); e("s_mov_b32 s%d, 0x0f0f0f0f" % (sMB + 1))
    e("s_mov_b32 s%d, 0xffff0000" % sMA); e("s_mov_b32 s%d, 0xffff0000" % (sMA + 1))
    g0, nb = wdma(0), len(vm)
    g1 = wdma(1)
    bias = [I("s_waitcnt vmcnt(%d)" % (nb - 2 + 4))]
    del vm[:2]
    for j in range(36):
        G = -2 * (j >> 2) if j < 16 else 1 - 2 * ((j - 16) >> 2)
        bias.append(I("ds_read_u16_d16_hi v%d, v%d offset:%d" % (BE + j, vBo, ((G + 7) * 15 + 3 - (j & 3)) * 8)))
    bias += [I("v_mul_f32 v%d, %s, v%d" % (BE + j, f32(48 ** 0.5), BE + j)) for j in range(36)]
    for gs, fill in ((g0 + g1[:4], p), (g1[4:], bias)):
        k = (len(fill) + len(gs) - 1) // len(gs)
        for i, grp in enumerate(gs):
            if fill is bias: head += fill[i * k:(i + 1) * k] + grp
            else: head += grp + fill[i * k:(i + 1) * k]
    p = head
    pst()
    return p

def pre():
    p = []
    def tr(dst, addr, off): p.append(I("ds_read_b64_tr_b16 %s, v%d offset:%d" % (dst, addr, off), rd=["W"]))
    def bump(regs, d): p.extend(I("v_add_u32 v%d, %d, v%d" % (r, d & 0xffffffff, r)) for r in regs)
    QA = [R, S(0, 0)]
    VA = [[R + 48, R + 52, R + 56], [R + 60, R + 64, R + 68], [88, 92, 96], [100, OX, OX + 4]]
    def mm(i):
        for ks in (2 * i, 2 * i + 1):
            for T in range(2):
                r, ins = xa_read(T, ks, 0); p.append(ins)
                for mt in range(3):
                    d = vr(QA[T] + 16 * mt, 16)
                    p.append(I("%s %s, %s, %s, %s" % (M32, d, WQK(mt, ks), vr(r, 4), d if ks else "0")))
        for vt in range(4):
            r = ring.get()
            p.append(I("ds_read_b128 %s, v%d offset:%d" % (vr(r, 4), vB + ((i & 1) ^ (vt & 1)), vt * 6144 + (i >> 1) * 1024), rd=["X"]))
            for t in range(3):
                d = vr(VA[vt][t], 4)
                p.append(I("%s %s, %s, %s, %s" % (M16, d, vr(r, 4), WV(t, i), d if i else "0")))
    def bar(tagname, tok, ea):
        p.append(I("s_waitcnt vmcnt(%d) lgkmcnt(0)" % vcount(tagname), wr=tok, early=ea))
        p.append(I("s_barrier", rd=tok, wr=tok))
    for i in range(6):
        ea = 576 * (i - 1) + OPT["pe"] if i else None
        bar("w%d" % i, ["W", "X"] if i == 0 else ["W"], ea)
        if i == 0: p += flat(wdma(2, t0=-8, dt=OPT["pe"] // 9))
        if 1 <= i <= 3: p += flat(wdma(i + 2, t0=ea))
        if i == 4:
            dt = 576 // (6 + OPT["wa"])
            p += xdma_t(1, 1, "x1", ea, dt, False) + flat(wdma(6, range(OPT["wa"]), ea + 6 * dt, dt))
        if i == 5: p += flat(wdma(6, range(OPT["wa"], 9), ea)) + flat(wdma(7, range(OPT["wb"] - 9), ea + 64 * (9 - OPT["wa"])))
        for k2 in range(2):
            for mt in range(3):
                for u in range(2):
                    tr(ar(((2 * i + k2) * 3 + mt) * 4 + 2 * u, 2), vTq1 if mt == 1 else vTq, (16 * k2 + 4 * u) * 1152 + (0, 64, 384 + 32)[mt])
        for t in range(3):
            for u in range(2):
                tr(ar(144 + (i * 3 + t) * 4 + 2 * u, 2), vTv, 4 * u * 1152 + 768 + 32 * t)
        if i < 5: bump((vTq, vTq1, vTv), 36864 * (slot(i + 1) - slot(i)))
        if i: mm(i - 1)
    mm(5)
    p += cvt_qk(0) + [cvt(R + 24 + j, S(0, 0) + 2 * j) for j in range(24)]
    for vt in range(4):
        for t in range(3):
            o = VP + ((vt >> 1) * 3 + t) * 4 + (vt & 1) * 2
            p += [cvt(o, VA[vt][t]), cvt(o + 1, VA[vt][t] + 2)]
    bar("x1", ["W", "X", "O"], 3456 - 100)
    p += flat(wdma(7, range(max(OPT["wb"] - 9, 0), 9), OPT["w7t"], OPT["w7s"])) + xdma_t(2, 0, "x2", OPT["x2t"], OPT["x2s"], True)
    p += win_mask(0) + win_store(0) + sgemm()
    p += softmax(0, False) + qk(0, 1) + pv(0) + cvt_qk(0)
    p += softmax(1, False) + qk(1, 1) + owrite(0, 0)
    bar("w7", ["W"], OPT["b7"])
    p += pv(1) + cvt_qk(1) + owrite(1, 0)
    p += [I("v_accvgpr_read_b32 v%d, a252" % vTo1), I("v_accvgpr_read_b32 v%d, a253" % vTo2)]
    for f in range(18):
        ks, t = KSO[f // 3], f % 3
        for u in range(2):
            row = (48 * ks + 16 * u if ks < 4 else 48 * (2 * (ks - 4) + u) + 32)
            dst = ar(216 + 4 * f + 2 * u, 2) if f < 10 else vr(WOP_REG[f - 10] + 2 * u, 2)
            tr(dst, vTo1 if t < 2 else vTo2, (row % 96) * 384 + (8 * t if t < 2 else 64)); p[-1].rd.add("O")
        if f == 8: bump((vTo1, vTo2), 36864)
    p += vgemm(1) + barrier()
    del vm[:]
    p += [I("ds_write_b128 v%d, %s offset:%d" % (vWP, vr(WOP_REG[f], 4), WOP - OT + f * 1024), rd=["O"]) for f in range(8)]
    q = proj(0)
    for c in q:
        if c.kind == "dsw": c.rd.add("O")
    return p + q

def stamp(i):
    if not OPT["dbg"]: return []
    if i == "loop":
        return [I("s_memtime s[62:63]"), I("s_mov_b32 s68, s69"), I("s_mov_b32 s69, s70"), I("s_mov_b32 s70, s71"),
                I("s_waitcnt lgkmcnt(0)"), I("s_mov_b32 s71, s62")]
    return [I("s_memtime s[62:63]"), I("s_waitcnt lgkmcnt(0)"), I("s_mov_b32 s%d, s62" % (64 + i))]

def dbg_end():
    if not OPT["dbg"]: return []
    t = ["s_waitcnt vmcnt(0)"] + [c.text for c in stamp(9)]
    t += ["s_memrealtime s[76:77]", "s_load_dwordx2 s[80:81], s[0:1], 56", "s_load_dwordx2 s[84:85], s[0:1], 64", "s_waitcnt lgkmcnt(0)",
          "s_mov_b32 s86, 0x100000", "s_mov_b32 s87, 0x00020000",
          "s_mov_b32 s82, 256", "s_mov_b32 s83, 0x00020000", "s_mov_b32 s75, s76",
          "v_mbcnt_lo_u32_b32 v1, -1, 0", "v_lshlrev_b32 v1, 2, v1", "v_mov_b32 v0, 0"]
    for i in range(1, 10): t.append("s_sub_u32 s%d, s%d, s64" % (64 + i, 64 + i))
    for i in range(1, 12): t.append("v_writelane_b32 v0, s%d, %d" % (64 + i, i))
    for i, q in enumerate(PAIRS): t += ["s_sub_u32 s%d, s%d, s64" % (q, q), "v_writelane_b32 v0, s%d, %d" % (q, 16 + i)]
    t += ["s_mov_b64 exec, 0xffffffff", "s_lshl_b32 s62, s2, 2", "s_add_u32 s62, s62, s%d" % sH, "s_lshl_b32 s62, s62, 7",
          "buffer_store_dword v0, v1, s[84:87], s62 offen",
          "s_cmp_lg_u32 s62, %d" % (OPT["dbg"] * 512), "s_cbranch_scc1 FIN", "buffer_store_dword v0, v1, s[80:83], 0 offen", "FIN:"]
    return t

def sch(p, hist, name):
    if OPT["sched"]:
        sys.stderr.write(name + " ")
        so = sys.stdout; sys.stdout = sys.stderr
        out, st = schedule(p, hist, verbose=True, slack=OPT["slack"])
        sys.stdout = so
    else:
        out = linear(p, hist)
    return out + [I("s_waitcnt lgkmcnt(0)")]

def main():
    pro = linear(prologue())
    GAP["vm"] = OPT["pgap"]
    pr = sch(pre(), pro, "pre")
    if OPT["pst"]:
        o2, i = [], 0
        for c in pr:
            o2.append(c)
            if c.kind == "barrier": o2.append(I("s_memtime %s" % sr(PAIRS[i if i < 5 else i + 4], 2))); i += 1
        pr = o2
    pr += stamp(3)
    GAP["vm"] = OPT["gap"]
    tailA = []
    for it in range(2):
        ring.i = 0
        pb, pa = body(1), body(0)
        B = sch(pb, tailA if it else pr, "B")
        B = instamp(B) if it else B
        ctl = stamp("loop") + [I("s_add_u32 s%d, s%d, 1" % (sCnt, sCnt)), I("s_cmp_eq_u32 s%d, 3" % sCnt),
               I("s_cselect_b32 s%d, 0, s%d" % (sXB + 2, sXB + 2)), I("s_cmp_eq_u32 s%d, 4" % sCnt), I("s_cbranch_scc1 LAST")]
        B = B + ctl
        tailA = sch(pa, B, "A") + [I("s_branch LOOP")]
    la = sch(last(), B, "last") + stamp(8)
    pad = [I("s_nop 7"), I("s_nop 3")]
    bad = verify(pro + pr + pad + B + tailA + B + la)
    assert not bad
    ref = open("cdna_kernels/%s.s.ref" % NAME).read().split("\n")
    head = [l for l in ref if l.startswith(";") and "@launch" not in l]
    o = head + ["; @launch grid=(256,1,1) block=(256,1,1) lds=163840",
         '.amdgcn_target "amdgcn-amd-amdhsa--gfx950"', ".text", ".globl %s_kernel" % NAME, ".p2align 8",
         ".type %s_kernel,@function" % NAME, "%s_kernel:" % NAME,
         "    s_cmp_ge_u32 s2, 256", "    s_cbranch_scc1 DONE"]
    def put(seq): o.extend("    " + c.text for c in seq)
    put(pro); put(pr); put(pad); o.append(".p2align 5"); o.append("LOOP:"); put(B); put(tailA); o.append("LAST:"); put(la)
    o += ["    " + t for t in dbg_end()]
    o += ["    s_waitcnt vmcnt(0)", "DONE:", "    s_endpgm", '.section .rodata,"a"', ".p2align 6", ".amdhsa_kernel %s_kernel" % NAME,
          "  .amdhsa_next_free_vgpr 512", "  .amdhsa_next_free_sgpr 102", "  .amdhsa_accum_offset 256",
          "  .amdhsa_group_segment_fixed_size 0", "  .amdhsa_kernarg_size 72", "  .amdhsa_user_sgpr_count 2",
          "  .amdhsa_user_sgpr_kernarg_segment_ptr 1", "  .amdhsa_system_sgpr_workgroup_id_x 1", ".end_amdhsa_kernel", ""]
    open(sys.argv[1], "w").write("\n".join(o))

main()
```
